```python
import torch

def _softmax(x, axis=-1):
    return torch.softmax(x, dim=axis)

def _gelu(x):
    return torch.nn.functional.gelu(x, approximate='tanh')

def _silu(x):
    return torch.nn.functional.silu(x)

def _sigmoid(x):
    return torch.sigmoid(x)

def _layernorm(x, axis=-1, eps=1e-05):
    m = x.mean(dim=axis, keepdim=True)
    v = x.var(dim=axis, keepdim=True, unbiased=False)
    return (x - m) / torch.sqrt(v + eps)

def _scatter_add(tgt, idx, src, axis=0):
    return tgt.clone().index_add_(axis, idx, src)

def _segment_sum(src, seg, n):
    out = torch.zeros((n,) + src.shape[1:], dtype=src.dtype)
    return out.index_add_(0, seg, src)

def _pad(x, pw):
    flat = tuple((v for pair in reversed(pw) for v in pair))
    return torch.nn.functional.pad(x, flat)
kernel_name = 'adaLN_cond__linear_kernel_hedgehog__glu_gated_geglu__prompt'

def setup_inputs():

    _w = lambda a: (lambda t: t.to(torch.bfloat16) if t.is_floating_point() else t)(torch.as_tensor(a))

    def _A_setup():
        B, S, D, H = (1, 2048, 576, 32)
        Dh = D // H
        return {'x': _w((lambda *s: torch.randn(*s, dtype=torch.bfloat16) * 0.05)(B, S, D)), 'wqkv': _w((lambda *s: torch.randn(*s, dtype=torch.bfloat16) * 0.4)(D, 3 * D)), 'w_phi': _w((lambda *s: torch.randn(*s, dtype=torch.bfloat16) * 0.4)(H, Dh, Dh) * Dh ** (-0.5)), 'wo': _w((lambda *s: torch.randn(*s, dtype=torch.bfloat16) * 0.05)(D, D))}
    _A_in = _A_setup()

    def _B_setup():
        B, S, Dm, Df = (1, 2048, 576, 4608)
        return {'x': _w((lambda *s: torch.randn(*s, dtype=torch.bfloat16) * 0.05)(B, S, Dm)), 'w_gate': _w((lambda *s: torch.randn(*s, dtype=torch.bfloat16) * 1.6)(Dm, Df) * Dm ** (-0.5)), 'w_up': _w((lambda *s: torch.randn(*s, dtype=torch.bfloat16) * 1.6)(Dm, Df) * Dm ** (-0.5)), 'w_down': _w((lambda *s: torch.randn(*s, dtype=torch.bfloat16) * 1.6)(Df, Dm) * Df ** (-0.5))}
    _B_in = _B_setup()
    return {'A_x': _A_in['x'], 'A_wqkv': _A_in['wqkv'], 'A_w_phi': _A_in['w_phi'], 'A_wo': _A_in['wo'], 'B_x': _B_in['x'], 'B_w_gate': _B_in['w_gate'], 'B_w_up': _B_in['w_up'], 'B_w_down': _B_in['w_down'], 'c': _w((lambda *s: torch.randn(*s, dtype=torch.bfloat16) * 0.1)(1, 576) * 8.0), 'w_mod': _w((lambda *s: torch.randn(*s, dtype=torch.bfloat16) * 0.1)(576, 6 * 576) * 576 ** (-0.5) * 8.0)}

def reference(A_x, A_wqkv, A_w_phi, A_wo, B_x, B_w_gate, B_w_up, B_w_down, c, w_mod):

    def _A_ref(x, wqkv, w_phi, wo):
        B, S, D = x.shape
        H = 32
        Dh = D // H
        qkv = (lambda x, *d: x.permute(*d))((x @ wqkv).reshape(B, S, 3, H, Dh), 2, 0, 3, 1, 4)
        q, k, v = (qkv[0], qkv[1], qkv[2])
        pq = torch.einsum('bhsd,hdf->bhsf', q, w_phi)
        pk = torch.einsum('bhsd,hdf->bhsf', k, w_phi)
        phi_q = torch.concatenate([_softmax(pq, axis=-1), _softmax(-pq, axis=-1)], axis=-1)
        phi_k = torch.concatenate([_softmax(pk, axis=-1), _softmax(-pk, axis=-1)], axis=-1)
        kv = torch.einsum('bhsf,bhsd->bhfd', phi_k, v)
        z = torch.einsum('bhsf->bhf', phi_k)
        num = torch.einsum('bhqf,bhfd->bhqd', phi_q, kv)
        den = torch.einsum('bhqf,bhf->bhq', phi_q, z)[..., None] + 1e-06
        o = num / den
        return (lambda x, *d: x.permute(*d))(o, 0, 2, 1, 3).reshape(B, S, D) @ wo

    def _B_ref(x, w_gate, w_up, w_down):
        g = torch.einsum('bsd,df->bsf', x, w_gate)
        u = torch.einsum('bsd,df->bsf', x, w_up)
        h = _gelu(g) * u
        return torch.einsum('bsf,fd->bsd', h, w_down)
    x = A_x
    mod = (_silu(c) @ w_mod).reshape(c.shape[0], 6, 1, -1)
    sa, ca, ga, sb, cb, gb = (mod[:, 0].clone(), mod[:, 1].clone(), mod[:, 2].clone(), mod[:, 3].clone(), mod[:, 4].clone(), mod[:, 5].clone())
    h = _layernorm(x, axis=-1) * (1 + ca) + sa
    x = x + ga * _A_ref(h, A_wqkv, A_w_phi, A_wo)
    h = _layernorm(x, axis=-1) * (1 + cb) + sb
    x = x + gb * _B_ref(h, B_w_gate, B_w_up, B_w_down)
    return x
```

```python
S, D, H, DH, DF = 2048, 576, 32, 18, 4608

WS_MOD = 0
WS_KV = 16384
WS_XN = 131072
WS_PHIQ = WS_XN + S * D * 2
WS_X1 = WS_PHIQ + S * 1152 * 2
WS_H2 = WS_X1 + S * D * 2
WS_HH = WS_H2 + S * D * 2
WS_PART = WS_HH + S * DF * 2
WS_END = WS_PART + 4 * S * D * 4
KV_BYTES = 32 * 20 * 40 * 4

KA = dict(x=0, wqkv=8, wphi=16, wo=24, bx=32, wg=40, wu=48, wd=56, c=64, wmod=72, out=80, dbg=88, ws=96)


def magic(d):
    return (2 ** 32 + d - 1) // d


class Asm:
    def __init__(self):
        self.L = []
        self.nlab = 0

    def __call__(self, s):
        for line in s.strip("\n").split("\n"):
            self.L.append("    " + line.strip())

    def label(self, n):
        self.L.append(n + ":")

    def newlabel(self, p="L"):
        self.nlab += 1
        return f"{p}_{self.nlab}"

    def c(self, s):
        self.L.append("    ; " + s)

    def nop(self, n):
        while n > 0:
            k = min(n, 16)
            self(f"s_nop {k-1}")
            n -= k

    def srd(self, d, blo, size):
        self(f"s_mov_b32 s{d}, s{blo}")
        self(f"s_and_b32 s{d+1}, s{blo+1}, 0xffff")
        self(f"s_mov_b32 s{d+2}, {size}")
        self(f"s_mov_b32 s{d+3}, 0x00020000")

    def srd_ws(self, d, ws, off, size):
        self(f"s_add_u32 s{d}, s{ws}, {off}")
        self(f"s_addc_u32 s{d+1}, s{ws+1}, 0")
        self(f"s_and_b32 s{d+1}, s{d+1}, 0xffff")
        self(f"s_mov_b32 s{d+2}, {size}")
        self(f"s_mov_b32 s{d+3}, 0x00020000")

    def text(self):
        return "\n".join(self.L) + "\n"


class Score:
    def __init__(self, a, kind):
        self.a = a
        self.kind = kind
        self.q = []
        self.max = 63 if kind == "vmcnt" else 15

    def issue(self, tag):
        self.q.append(tag)

    def wait(self, tag):
        idx = None
        for i, t in enumerate(self.q):
            if t == tag:
                idx = i
        if idx is None:
            return
        n = len(self.q) - 1 - idx
        if n > self.max:
            n = self.max
        self.a(f"s_waitcnt {self.kind}({n})")
        self.q = self.q[len(self.q) - n:] if n > 0 else []

    def wait_all(self):
        self.a(f"s_waitcnt {self.kind}(0)")
        self.q = []


def vr(b, n=1):
    return f"v{b}" if n == 1 else f"v[{b}:{b+n-1}]"


def sr(b, n=1):
    return f"s{b}" if n == 1 else f"s[{b}:{b+n-1}]"


def kernel_header(a, name):
    a.L.append(f".globl {name}")
    a.L.append(".p2align 8")
    a.L.append(f".type {name},@function")
    a.L.append(f"{name}:")


def kernel_desc(name, vgpr, sgpr=96, accum=None):
    if accum is None:
        accum = (min(vgpr, 256) + 3) // 4 * 4
    return f""".amdhsa_kernel {name}
  .amdhsa_next_free_vgpr {vgpr}
  .amdhsa_next_free_sgpr {sgpr}
  .amdhsa_accum_offset {accum}
  .amdhsa_group_segment_fixed_size 0
  .amdhsa_kernarg_size 104
  .amdhsa_user_sgpr_count 2
  .amdhsa_user_sgpr_kernarg_segment_ptr 1
  .amdhsa_system_sgpr_workgroup_id_x 1
  .amdhsa_float_denorm_mode_32 3
.end_amdhsa_kernel
"""
```

```python
from common import *

NMOD = 108
NLN = 64
LOG2E = 0x3fb8aa3b


def bf16r(a, v, tmp=None):
    a(f"v_cvt_pk_bf16_f32 v{v}, v{v}, v{v}")
    a(f"v_and_b32 v{v}, 0xffff0000, v{v}")


def gen_k0(a):
    kernel_header(a, "k0_kernel")
    a(f"s_cmp_ge_u32 s2, {NMOD+NLN}")
    a("s_cbranch_scc1 K0_END")
    a(f"s_load_dwordx2 s[4:5], s[0:1], {KA['ws']}")
    a(f"s_load_dwordx2 s[6:7], s[0:1], {KA['c']}")
    a(f"s_load_dwordx2 s[8:9], s[0:1], {KA['wmod']}")
    a(f"s_load_dwordx2 s[10:11], s[0:1], {KA['x']}")
    a("s_waitcnt lgkmcnt(0)")
    a(f"s_cmp_ge_u32 s2, {NMOD}")
    a("s_cbranch_scc1 K0_LN")
    a.srd(12, 6, 1152)
    a.srd(16, 8, 576 * 6912)
    a.srd_ws(20, 4, WS_MOD, 3456 * 4)
    a("v_and_b32 v1, 15, v0")
    a("v_lshrrev_b32 v2, 4, v0")
    a("v_mul_u32_u24 v3, 6912, v2")
    a("v_lshl_add_u32 v3, v1, 2, v3")
    a("s_lshl_b32 s24, s2, 6")
    a("v_add_u32 v3, s24, v3")
    a("s_mov_b32 s25, 0")
    for i in range(36):
        a(f"buffer_load_dword v{10+i}, v3, s[16:19], s25 offen")
        a(f"s_add_u32 s25, s25, {16*6912}")
    a("v_lshlrev_b32 v4, 1, v0")
    a("buffer_load_ushort v50, v4, s[12:15], 0 offen")
    a("buffer_load_ushort v51, v4, s[12:15], 0 offen offset:512")
    a("buffer_load_ushort v52, v4, s[12:15], 0 offen offset:1024")
    a("s_waitcnt vmcnt(0)")
    a(f"s_mov_b32 s26, {LOG2E}")
    for j in range(3):
        v = 50 + j
        a(f"v_lshlrev_b32 v{v}, 16, v{v}")
        a(f"v_mul_f32 v53, s26, v{v}")
        a("v_sub_f32 v53, 0, v53")
        a("v_exp_f32 v53, v53")
        a("s_nop 0")
        a("v_add_f32 v53, 1.0, v53")
        a("v_rcp_f32 v53, v53")
        a("s_nop 0")
        a(f"v_mul_f32 v{v}, v{v}, v53")
        bf16r(a, v)
    a("v_lshlrev_b32 v4, 2, v0")
    a("ds_write_b32 v4, v50")
    a("ds_write_b32 v4, v51 offset:1024")
    a("ds_write_b32 v4, v52 offset:2048")
    a("s_waitcnt lgkmcnt(0)")
    a("s_barrier")
    a("v_lshlrev_b32 v4, 2, v2")
    for i in range(36):
        a(f"ds_read_b32 v{60+i}, v4 offset:{64*i}")
    a("v_mov_b32 v98, 0")
    a("v_mov_b32 v99, 0")
    a("s_waitcnt lgkmcnt(0)")
    for i in range(36):
        a(f"v_lshlrev_b32 v7, 16, v{10+i}")
        a(f"v_and_b32 v8, 0xffff0000, v{10+i}")
        a(f"v_fmac_f32 v98, v7, v{60+i}")
        a(f"v_fmac_f32 v99, v8, v{60+i}")
    a("v_lshlrev_b32 v4, 7, v2")
    a("v_lshl_add_u32 v4, v1, 3, v4")
    a("ds_write_b64 v4, v[98:99] offset:4096")
    a("s_waitcnt lgkmcnt(0)")
    a("s_barrier")
    a("v_cmp_gt_u32 vcc, 32, v0")
    a("s_and_saveexec_b64 s[28:29], vcc")
    a("s_cbranch_execz K0_END")
    a("v_lshlrev_b32 v4, 2, v0")
    for i in range(16):
        a(f"ds_read_b32 v{10+i}, v4 offset:{4096+128*i}")
    a("s_waitcnt lgkmcnt(0)")
    for i in range(1, 16):
        a(f"v_add_f32 v10, v10, v{10+i}")
    bf16r(a, 10)
    a("s_mov_b32 s27, 0")
    a("s_cmp_ge_u32 s2, 18")
    a("s_cselect_b32 s27, 1, 0")
    a("s_cmp_ge_u32 s2, 36")
    a("s_cselect_b32 s27, 0, s27")
    a("s_cmp_ge_u32 s2, 72")
    a("s_cselect_b32 s27, 1, s27")
    a("s_cmp_ge_u32 s2, 90")
    a("s_cselect_b32 s27, 0, s27")
    a("s_cmp_eq_u32 s27, 0")
    a("s_cbranch_scc1 K0_MODST")
    a("v_add_f32 v10, 1.0, v10")
    bf16r(a, 10)
    a.label("K0_MODST")
    a("s_lshl_b32 s24, s2, 7")
    a("v_add_u32 v4, s24, v4")
    a("buffer_store_dword v10, v4, s[20:23], 0 offen")
    a("s_endpgm")
    a.label("K0_LN")
    a(f"s_sub_u32 s3, s2, {NMOD}")
    a.srd(12, 10, S * D * 2)
    a.srd_ws(16, 4, WS_XN, S * D * 2)
    a.srd_ws(20, 4, WS_KV, KV_BYTES)
    a("s_lshl_b32 s24, s3, 12")
    a("v_lshl_add_u32 v1, v0, 4, s24")
    a("v_mov_b32 v4, 0")
    a("v_mov_b32 v5, 0")
    a("v_mov_b32 v6, 0")
    a("v_mov_b32 v7, 0")
    a("buffer_store_dwordx4 v[4:7], v1, s[20:23], 0 offen")
    a("v_lshrrev_b32 v1, 3, v0")
    a("s_lshl_b32 s24, s3, 5")
    a("v_add_u32 v1, s24, v1")
    a("v_mul_u32_u24 v1, 1152, v1")
    a("v_and_b32 v2, 7, v0")
    a("v_lshl_add_u32 v1, v2, 4, v1")
    for i in range(9):
        a(f"buffer_load_dwordx4 v[{12+4*i}:{15+4*i}], v1, s[12:15], 0 offen offset:{128*i}")
    a("s_waitcnt vmcnt(0)")
    for i in range(36):
        a(f"v_lshlrev_b32 v{48+2*i}, 16, v{12+i}")
        a(f"v_and_b32 v{49+2*i}, 0xffff0000, v{12+i}")
    a("v_mov_b32 v3, 0")
    a("v_mov_b32 v4, 0")
    for i in range(0, 72, 2):
        a(f"v_add_f32 v3, v3, v{48+i}")
        a(f"v_add_f32 v4, v4, v{49+i}")
    a("v_add_f32 v3, v3, v4")

    def red8(v):
        for m in (1, 2, 4):
            a(f"ds_swizzle_b32 v5, v{v} offset:{(m<<10)|0x1f}")
            a("s_waitcnt lgkmcnt(0)")
            a(f"v_add_f32 v{v}, v{v}, v5")
    red8(3)
    a(f"s_mov_b32 s25, 0x3ae38e39")
    a("v_mul_f32 v3, s25, v3")
    a("v_mov_b32 v4, 0")
    a("v_mov_b32 v6, 0")
    for i in range(0, 72, 2):
        a(f"v_sub_f32 v7, v{48+i}, v3")
        a(f"v_sub_f32 v8, v{49+i}, v3")
        a("v_fmac_f32 v4, v7, v7")
        a("v_fmac_f32 v6, v8, v8")
    a("v_add_f32 v4, v4, v6")
    red8(4)
    a("v_mul_f32 v4, s25, v4")
    bf16r(a, 3)
    bf16r(a, 4)
    a("v_add_f32 v4, 0x3727c5ac, v4")
    bf16r(a, 4)
    a("v_sqrt_f32 v4, v4")
    a("s_nop 0")
    bf16r(a, 4)
    a("v_rcp_f32 v4, v4")
    a("s_nop 0")
    for i in range(36):
        a(f"v_sub_f32 v7, v{48+2*i}, v3")
        a(f"v_sub_f32 v8, v{49+2*i}, v3")
        a("v_cvt_pk_bf16_f32 v7, v7, v8")
        a("v_and_b32 v8, 0xffff0000, v7")
        a("v_lshlrev_b32 v7, 16, v7")
        a("v_mul_f32 v7, v7, v4")
        a("v_mul_f32 v8, v8, v4")
        a(f"v_cvt_pk_bf16_f32 v{12+i}, v7, v8")
    a("s_nop 1")
    for i in range(9):
        a(f"buffer_store_dwordx4 v[{12+4*i}:{15+4*i}], v1, s[16:19], 0 offen offset:{128*i}")
    a.label("K0_END")
    a("s_endpgm")
    return kernel_desc("k0_kernel", 128, 48), f"; @launch kernel=k0_kernel grid=({NMOD+NLN},1,1) block=(256,1,1) lds=8192"


def gen_k5(a):
    kernel_header(a, "k5_kernel")
    NWG = S * D // 4 // 256
    a(f"s_cmp_ge_u32 s2, {NWG}")
    a("s_cbranch_scc1 K5_END")
    a(f"s_load_dwordx2 s[4:5], s[0:1], {KA['ws']}")
    a(f"s_load_dwordx2 s[6:7], s[0:1], {KA['out']}")
    a("s_waitcnt lgkmcnt(0)")
    a.srd_ws(8, 4, WS_PART, 4 * S * D * 4)
    a.srd_ws(12, 4, WS_X1, S * D * 2)
    a.srd_ws(16, 4, WS_MOD, 3456 * 4)
    a.srd(20, 6, S * D * 2)
    a("s_lshl_b32 s24, s2, 8")
    a("v_add_u32 v1, s24, v0")
    a("v_lshlrev_b32 v2, 4, v1")
    a("v_lshlrev_b32 v3, 3, v1")
    P = S * D * 4
    for k in range(4):
        a(f"s_mov_b32 s25, {k*P}")
        a(f"buffer_load_dwordx4 v[{8+4*k}:{11+4*k}], v2, s[8:11], s25 offen")
    a("buffer_load_dwordx2 v[24:25], v3, s[12:15], 0 offen")
    a(f"s_mov_b32 s26, {magic(144)}")
    a("v_mul_hi_u32 v4, v1, s26")
    a("v_mul_u32_u24 v4, 144, v4")
    a("v_sub_u32 v4, v1, v4")
    a("v_lshlrev_b32 v4, 4, v4")
    a(f"s_mov_b32 s25, {5*576*4}")
    a("buffer_load_dwordx4 v[28:31], v4, s[16:19], s25 offen")
    a("s_waitcnt vmcnt(0)")
    for j in range(4):
        a(f"v_add_f32 v{8+j}, v{8+j}, v{12+j}")
        a(f"v_add_f32 v{16+j}, v{16+j}, v{20+j}")
        a(f"v_add_f32 v{8+j}, v{8+j}, v{16+j}")
    a("v_cvt_pk_bf16_f32 v12, v8, v9")
    a("v_cvt_pk_bf16_f32 v13, v10, v11")
    a("v_lshlrev_b32 v8, 16, v12")
    a("v_and_b32 v9, 0xffff0000, v12")
    a("v_lshlrev_b32 v10, 16, v13")
    a("v_and_b32 v11, 0xffff0000, v13")
    for j in range(4):
        a(f"v_mul_f32 v{8+j}, v{8+j}, v{28+j}")
    a("v_cvt_pk_bf16_f32 v12, v8, v9")
    a("v_cvt_pk_bf16_f32 v13, v10, v11")
    a("v_lshlrev_b32 v8, 16, v12")
    a("v_and_b32 v9, 0xffff0000, v12")
    a("v_lshlrev_b32 v10, 16, v13")
    a("v_and_b32 v11, 0xffff0000, v13")
    a("v_lshlrev_b32 v16, 16, v24")
    a("v_and_b32 v17, 0xffff0000, v24")
    a("v_lshlrev_b32 v18, 16, v25")
    a("v_and_b32 v19, 0xffff0000, v25")
    for j in range(4):
        a(f"v_add_f32 v{8+j}, v{8+j}, v{16+j}")
    a("v_cvt_pk_bf16_f32 v12, v8, v9")
    a("v_cvt_pk_bf16_f32 v13, v10, v11")
    a("buffer_store_dwordx2 v[12:13], v3, s[20:23], 0 offen")
    a.label("K5_END")
    a("s_endpgm")
    return kernel_desc("k5_kernel", 32, 32), f"; @launch kernel=k5_kernel grid=({NWG},1,1) block=(256,1,1) lds=0"
```

```python
from common import *
LOG2E = 0x3fb8aa3b

L_WT = 0
L_MOD = 2048
L_W = 6656
L_PK = L_W
L_VV = L_W + 128 * 200
K1_LDS = L_W + 136 * 1024 + 256


def gen_k1(a):
    kernel_header(a, "k1_kernel")
    vm = Score(a, "vmcnt")
    lg = Score(a, "lgkmcnt")
    XF = lambda p, ks: 100 + (p * 18 + ks) * 4
    ACC = lambda T, p: 24 + (T * 2 + p) * 4
    a("s_cmp_ge_u32 s2, 256")
    a("s_cbranch_scc1 K1_END")
    a(f"s_load_dwordx2 s[4:5], s[0:1], {KA['ws']}")
    a(f"s_load_dwordx2 s[6:7], s[0:1], {KA['wqkv']}")
    a(f"s_load_dwordx2 s[8:9], s[0:1], {KA['wphi']}")
    a("v_lshrrev_b32 v2, 6, v0")
    a("v_and_b32 v1, 63, v0")
    a("s_nop 0")
    a("v_readfirstlane_b32 s3, v2")
    a("s_and_b32 s40, s2, 15")
    a("s_lshr_b32 s41, s2, 4")
    a("s_waitcnt lgkmcnt(0)")
    a.srd(12, 6, 576 * 3456)
    a.srd_ws(16, 4, WS_XN, S * D * 2)
    a.srd_ws(20, 4, WS_MOD, 3456 * 4)
    a.srd(24, 8, 32 * 324 * 2)
    a.srd_ws(28, 4, WS_PHIQ, S * 1152 * 2)
    a.srd_ws(32, 4, WS_KV, KV_BYTES)
    a("v_and_b32 v3, 15, v1")
    a("v_lshrrev_b32 v4, 4, v1")
    a("v_lshlrev_b32 v5, 4, v0")
    a("buffer_load_dwordx4 v[24:27], v5, s[20:23], 0 offen"); vm.issue("mod")
    a("v_add_u32 v6, 4096, v5")
    a("v_cmp_gt_u32 vcc, 32, v0")
    a("s_nop 1")
    a("v_cndmask_b32 v6, -1, v6, vcc")
    a("buffer_load_dwordx4 v[28:31], v6, s[20:23], 0 offen"); vm.issue("mod")
    a("s_lshl_b32 s42, s40, 7")
    a("s_lshl_b32 s43, s3, 5")
    a("s_add_u32 s42, s42, s43")
    a("v_add_u32 v6, s42, v3")
    a("v_mul_u32_u24 v6, 1152, v6")
    a("v_lshl_add_u32 v6, v4, 4, v6")
    a(f"v_add_u32 v7, {16*1152}, v6")
    for p in range(2):
        for ks in range(18):
            a(f"buffer_load_dwordx4 {vr(XF(p,ks),4)}, v{6+p}, s[16:19], 0 offen offset:{64*ks}"); vm.issue("xn")
    a(f"s_mov_b32 s44, {magic(480)}")
    a(f"s_mov_b32 s45, {magic(24)}")
    a("s_mul_i32 s46, s41, 648*2")
    for j in range(4):
        a(f"v_add_u32 v8, {256*j}, v0")
        a("v_mul_hi_u32 v9, v8, s44")
        a("v_mul_u32_u24 v10, 480, v9")
        a("v_sub_u32 v10, v8, v10")
        a("v_mul_hi_u32 v11, v10, s45")
        a("v_mul_u32_u24 v12, 24, v11")
        a("v_sub_u32 v12, v10, v12")
        a("v_lshlrev_b32 v13, 1, v9")
        a("v_sub_u32 v12, v12, v13")
        a("v_mul_u32_u24 v13, 324, v9")
        a("v_mul_u32_u24 v14, 18, v12")
        a("v_add3_u32 v13, v13, v14, v11")
        a("v_lshl_add_u32 v13, v13, 1, s46")
        a("v_cmp_gt_u32 vcc, 18, v12")
        a("v_cmp_gt_u32 s[48:49], 18, v11")
        a("s_nop 1")
        a("v_cndmask_b32 v13, -1, v13, vcc")
        a("v_cndmask_b32 v13, -1, v13, s[48:49]")
        if j == 3:
            a("v_cmp_gt_u32 vcc, 960, v8")
            a("s_nop 1")
            a("v_cndmask_b32 v13, -1, v13, vcc")
        a(f"buffer_load_ushort v{88+j}, v13, s[24:27], 0 offen"); vm.issue("wt")
    vm.wait("mod")
    a(f"ds_write_b128 v5, v[24:27] offset:{L_MOD}")
    a("v_cmp_gt_u32 vcc, 32, v0")
    a("s_and_saveexec_b64 s[48:49], vcc")
    a(f"ds_write_b128 v5, v[28:31] offset:{L_MOD+4096}")
    a("s_mov_b64 exec, s[48:49]")
    a(f"s_mov_b32 s44, {magic(15)}")
    a("s_mul_i32 s46, s41, 72")
    a("s_and_b32 s47, s46, 8")
    a("s_andn2_b32 s46, s46, 15")
    a("s_mul_i32 s50, s3, 34")
    a("s_lshl_b32 s51, s50, 6")
    a("v_add_u32 v8, s51, v1")
    a("s_lshl_b32 s51, s50, 10")
    a(f"s_add_u32 s51, s51, {L_W}")
    for i in range(34):
        a("v_mul_hi_u32 v9, v8, s44")
        a("v_mul_u32_u24 v10, 15, v9")
        a("v_sub_u32 v10, v8, v10")
        a("v_mul_u32_u24 v11, 13, v10")
        a("v_lshrrev_b32 v11, 6, v11")
        a("v_mul_u32_u24 v9, 3456, v9")
        a("v_mul_u32_u24 v11, 1072, v11")
        a("v_lshl_add_u32 v9, v10, 4, v9")
        a("v_add3_u32 v9, v9, v11, s46")
        a(f"s_add_u32 m0, s51, {1024*i}")
        a("v_add_u32 v8, 64, v8")
        a("buffer_load_dwordx4 v9, s[12:15], 0 offen lds"); vm.issue("dma")
    vm.wait("wt")
    a("v_lshlrev_b32 v8, 1, v0")
    for j in range(4):
        a(f"ds_write_b16 v8, v{88+j} offset:{L_WT+512*j}")
    a("s_waitcnt lgkmcnt(0)")
    a("s_barrier")
    a("v_lshlrev_b32 v8, 5, v4")
    def modreads(ks, base):
        a(f"ds_read_b128 {vr(base,4)}, v8 offset:{L_MOD+128*ks}"); lg.issue(("m", ks))
        a(f"ds_read_b128 {vr(base+4,4)}, v8 offset:{L_MOD+128*ks+16}"); lg.issue(("m", ks))
        a(f"ds_read_b128 {vr(base+8,4)}, v8 offset:{L_MOD+2304+128*ks}"); lg.issue(("m", ks))
        a(f"ds_read_b128 {vr(base+12,4)}, v8 offset:{L_MOD+2304+128*ks+16}"); lg.issue(("m", ks))
    modreads(0, 24)
    for ks in range(18):
        base = 24 + 16 * (ks & 1)
        if ks + 1 < 18:
            modreads(ks + 1, 24 + 16 * ((ks + 1) & 1))
        lg.wait(("m", ks))
        for p in range(2):
            for j in range(4):
                x = XF(p, ks) + j
                a(f"v_lshlrev_b32 v9, 16, v{x}")
                a(f"v_and_b32 v10, 0xffff0000, v{x}")
                a(f"v_fma_f32 v9, v9, v{base+8+2*j}, v{base+2*j}")
                a(f"v_fma_f32 v10, v10, v{base+9+2*j}, v{base+1+2*j}")
                a(f"v_cvt_pk_bf16_f32 v{x}, v9, v10")
    a("v_lshrrev_b32 v9, 2, v3")
    a("v_and_b32 v10, 3, v1")
    a("v_lshl_add_u32 v9, v4, 3, v9")
    a("v_mul_u32_u24 v9, 240, v9")
    a(f"v_add_u32 v9, {L_W}, v9")
    a("v_add_u32 v9, s47, v9")
    a("v_and_b32 v11, 1, v10")
    a("v_lshlrev_b32 v11, 5, v11")
    a("v_lshrrev_b32 v12, 1, v10")
    a("v_mul_u32_u24 v12, 80, v12")
    a("v_add3_u32 v88, v9, v11, v12")
    a("v_lshl_add_u32 v89, v10, 3, v9")
    a("v_add_u32 v89, 160, v89")
    vm.wait_all()
    a("s_barrier")
    seq = [(ks, T) for ks in range(18) for T in range(8)]
    def rd(n):
        ks, T = seq[n]
        if T == 0 and ks in (8, 16):
            a("v_add_u32 v88, 61440, v88")
            a("v_add_u32 v89, 61440, v89")
        b = 8 + 4 * (n & 3)
        kk = ks & 7
        if T < 5:
            off = kk * 7680 + 8 * T
            ad = "v88"
        else:
            off = kk * 7680 + 32 * (T - 5)
            ad = "v89"
        a(f"ds_read_b64_tr_b16 {vr(b,2)}, {ad} offset:{off}"); lg.issue(("a", n))
        a(f"ds_read_b64_tr_b16 {vr(b+2,2)}, {ad} offset:{off+960}"); lg.issue(("a", n))
    for n in range(3):
        rd(n)
    for n in range(len(seq)):
        ks, T = seq[n]
        if n + 3 < len(seq):
            rd(n + 3)
        lg.wait(("a", n))
        b = 8 + 4 * (n & 3)
        for p in range(2):
            c = "0" if ks == 0 else vr(ACC(T, p), 4)
            a(f"v_mfma_f32_16x16x32_bf16 {vr(ACC(T,p),4)}, {vr(b,4)}, {vr(XF(p,ks),4)}, {c}")
    a.nop(10)
    a("s_barrier")
    a("s_lshl_b32 s43, s3, 5")
    a("v_add_u32 v8, s43, v3")
    a("v_mul_u32_u24 v9, 104, v8")
    a("v_lshl_add_u32 v9, v4, 3, v9")
    for p in range(2):
        for tv in range(3):
            c = ACC(5 + tv, p)
            a(f"v_cvt_pk_bf16_f32 v10, v{c}, v{c+1}")
            a(f"v_cvt_pk_bf16_f32 v11, v{c+2}, v{c+3}")
            a(f"ds_write_b64 v9, v[10:11] offset:{L_VV + p*16*104 + 32*tv}")
    APH = lambda t, u: 100 + (t * 3 + u) * 4
    a("v_lshrrev_b32 v9, 2, v3")
    a("v_and_b32 v10, 3, v1")
    a("v_and_b32 v11, 1, v9")
    a("v_mul_u32_u24 v11, 960, v11")
    a("v_mul_u32_u24 v12, 48, v10")
    a("v_add_u32 v11, v11, v12")
    a("v_cmp_eq_u32 s[48:49], v9, v4")
    for t in range(5):
        for u in range(3):
            a(f"ds_read_b128 {vr(APH(t,u),4)}, v11 offset:{L_WT + t*192 + 16*u}")
    a("s_waitcnt lgkmcnt(0)")
    for i in range(60):
        a(f"v_cndmask_b32 v{100+i}, 0, v{100+i}, s[48:49]")
    BQ = lambda u: 160 + 4 * u
    P = 172
    EP, EM, OUT = 192, 210, 228
    a(f"s_mov_b32 s44, {LOG2E}")
    a("v_mov_b32 v170, 0")
    a("v_mov_b32 v171, 0")
    a("v_add_u32 v90, s42, v3")
    a("v_mul_u32_u24 v90, 2304, v90")
    a("s_lshl_b32 s45, s41, 1")
    a("v_add_u32 v91, s45, v4")
    a("v_mul_u32_u24 v91, 72, v91")
    a("v_add_u32 v90, v90, v91")
    a("v_mul_u32_u24 v91, 200, v8")
    a("v_and_b32 v92, 1, v4")
    a("v_mul_u32_u24 v92, 96, v92")
    a("v_add_u32 v91, v91, v92")
    for p in range(2):
        for u in range(3):
            for h in range(2):
                T = 2 * u + h
                if T < 5:
                    c = ACC(T, p)
                    a(f"v_cvt_pk_bf16_f32 v{BQ(u)+2*h}, v{c}, v{c+1}")
                    a(f"v_cvt_pk_bf16_f32 v{BQ(u)+2*h+1}, v{c+2}, v{c+3}")
        a.nop(2)
        for t in range(5):
            for u in range(3):
                c = "0" if u == 0 else vr(P + 4 * t, 4)
                a(f"v_mfma_f32_16x16x32_bf16 {vr(P+4*t,4)}, {vr(APH(t,u),4)}, {vr(BQ(u),4)}, {c}")
        a.nop(10)
        for j in range(0, 18, 2):
            a(f"v_cvt_pk_bf16_f32 v93, v{P+j}, v{P+j+1}")
            a(f"v_lshlrev_b32 v{P+j}, 16, v93")
            a(f"v_and_b32 v{P+j+1}, 0xffff0000, v93")
        a(f"v_max3_f32 v93, v{P}, v{P+1}, v{P+2}")
        a(f"v_min3_f32 v94, v{P}, v{P+1}, v{P+2}")
        for j in range(3, 17, 2):
            a(f"v_max3_f32 v93, v93, v{P+j}, v{P+j+1}")
            a(f"v_min3_f32 v94, v94, v{P+j}, v{P+j+1}")
        a(f"v_max_f32 v93, v93, v{P+17}")
        a(f"v_min_f32 v94, v94, v{P+17}")
        a("v_mul_f32 v93, s44, v93")
        a("v_mul_f32 v94, s44, v94")
        for j in range(18):
            a(f"v_fma_f32 v{EP+j}, v{P+j}, s44, -v93")
            a(f"v_fma_f32 v{EM+j}, -v{P+j}, s44, v94")
        for j in range(18):
            a(f"v_exp_f32 v{EP+j}, v{EP+j}")
            a(f"v_exp_f32 v{EM+j}, v{EM+j}")
        a("s_nop 0")
        a(f"v_add_f32 v93, v{EP}, v{EP+1}")
        a(f"v_add_f32 v94, v{EM}, v{EM+1}")
        for j in range(2, 18):
            a(f"v_add_f32 v93, v93, v{EP+j}")
            a(f"v_add_f32 v94, v94, v{EM+j}")
        a("v_rcp_f32 v93, v93")
        a("v_rcp_f32 v94, v94")
        a("s_nop 0")
        for j in range(18):
            a(f"v_mul_f32 v{EP+j}, v{EP+j}, v93")
            a(f"v_mul_f32 v{EM+j}, v{EM+j}, v94")
        for j in range(9):
            a(f"v_cvt_pk_bf16_f32 v{OUT+j}, v{EP+2*j}, v{EP+2*j+1}")
            a(f"v_cvt_pk_bf16_f32 v{OUT+9+j}, v{EM+2*j}, v{EM+2*j+1}")
        a("s_mov_b64 exec, 0xffffffff")
        po = p * 16 * 2304
        a(f"v_add_u32 v95, {po}, v90")
        for i in range(4):
            a(f"buffer_store_dwordx4 {vr(OUT+4*i,4)}, v95, s[28:31], 0 offen offset:{16*i}")
        a(f"buffer_store_dwordx2 {vr(OUT+16,2)}, v95, s[28:31], 0 offen offset:64")
        a("s_mov_b32 exec_lo, 0")
        a("s_mov_b32 exec_hi, -1")
        for i in range(9):
            a(f"ds_write_b64 v91, {vr(OUT+2*i,2)} offset:{L_PK + p*16*200 + 8*i}")
        a("s_mov_b64 exec, -1")
        a.nop(2)
    a("s_waitcnt lgkmcnt(0)")
    a("s_barrier")
    a("s_and_b32 s45, s3, 1")
    a("s_lshr_b32 s46, s3, 1")
    a("v_lshrrev_b32 v9, 2, v3")
    a("v_and_b32 v10, 3, v1")
    a("v_lshl_add_u32 v9, v4, 3, v9")
    a("v_mul_u32_u24 v11, 200, v9")
    a("v_lshl_add_u32 v11, v10, 3, v11")
    a("s_mul_i32 s47, s45, 96")
    a(f"s_add_u32 s47, s47, {L_PK}")
    a("v_add_u32 v11, s47, v11")
    a("v_mul_u32_u24 v12, 104, v9")
    a("v_lshl_add_u32 v12, v10, 3, v12")
    a("s_lshl_b32 s47, s45, 5")
    a("s_lshl_b32 s50, s46, 5")
    a("s_add_u32 s47, s47, s50")
    a(f"s_add_u32 s47, s47, {L_VV}")
    a("v_add_u32 v12, s47, v12")
    a("v_mov_b32 v96, 0x3f803f80")
    a("v_mov_b32 v97, 0x3f803f80")
    a("v_mov_b32 v98, 0x3f803f80")
    a("v_mov_b32 v99, 0x3f803f80")
    for kk in range(4):
        a(f"ds_read_b64_tr_b16 {vr(100+4*kk,2)}, v12 offset:{kk*32*104}")
        a(f"ds_read_b64_tr_b16 {vr(102+4*kk,2)}, v12 offset:{kk*32*104+4*104}")
        for b in range(3):
            r = 116 + (b * 4 + kk) * 4
            a(f"ds_read_b64_tr_b16 {vr(r,2)}, v11 offset:{kk*32*200+32*b}")
            a(f"ds_read_b64_tr_b16 {vr(r+2,2)}, v11 offset:{kk*32*200+32*b+4*200}")
    a("s_waitcnt lgkmcnt(0)")
    KV = 24
    ZZ = 40
    for b in range(3):
        for kk in range(4):
            c = "0" if kk == 0 else vr(KV + 4 * b, 4)
            a(f"v_mfma_f32_16x16x32_bf16 {vr(KV+4*b,4)}, {vr(100+4*kk,4)}, {vr(116+(b*4+kk)*4,4)}, {c}")
    a("s_cmp_eq_u32 s46, 0")
    a("s_cbranch_scc0 K1_NOZ")
    for b in range(3):
        for kk in range(4):
            c = "0" if kk == 0 else vr(ZZ + 4 * b, 4)
            a(f"v_mfma_f32_16x16x32_bf16 {vr(ZZ+4*b,4)}, v[96:99], {vr(116+(b*4+kk)*4,4)}, {c}")
    a.label("K1_NOZ")
    a("s_lshl_b32 s47, s41, 1")
    a("s_add_u32 s47, s47, s45")
    a("s_mul_i32 s47, s47, 3200")
    a("s_lshl_b32 s50, s46, 4")
    a("s_lshl_b32 s51, s45, 1")
    a("s_sub_u32 s50, s50, s51")
    a("v_lshl_add_u32 v9, v4, 2, s50")
    a("v_lshlrev_b32 v10, 2, v3")
    a("v_add_u32 v10, s47, v10")
    a("v_cmp_gt_u32 s[52:53], 4, v3")
    a.nop(8)
    for r in range(4):
        a(f"v_add_u32 v11, {r}, v9")
        a("v_cmp_gt_u32 s[54:55], 18, v11")
        a("v_mul_u32_u24 v12, 160, v11")
        a("v_add_u32 v12, v12, v10")
        a("s_nop 1")
        a("s_mov_b64 exec, s[54:55]")
        a(f"buffer_atomic_add_f32 v{KV+r}, v12, s[32:35], 0 offen")
        a(f"buffer_atomic_add_f32 v{KV+4+r}, v12, s[32:35], 0 offen offset:64")
        a("s_and_b64 exec, s[54:55], s[52:53]")
        a(f"buffer_atomic_add_f32 v{KV+8+r}, v12, s[32:35], 0 offen offset:128")
        a("s_mov_b64 exec, -1")
    a("s_cmp_eq_u32 s46, 0")
    a("s_cbranch_scc0 K1_END")
    a("s_mov_b64 exec, 0xffff")
    a(f"buffer_atomic_add_f32 v{ZZ}, v10, s[32:35], 0 offen offset:{18*160}")
    a(f"buffer_atomic_add_f32 v{ZZ+4}, v10, s[32:35], 0 offen offset:{18*160+64}")
    a("s_mov_b64 exec, 0xf")
    a(f"buffer_atomic_add_f32 v{ZZ+8}, v10, s[32:35], 0 offen offset:{18*160+128}")
    a.label("K1_END")
    a("s_endpgm")
    return kernel_desc("k1_kernel", 256, 64), f"; @launch kernel=k1_kernel grid=(256,1,1) block=(256,1,1) lds={K1_LDS}"
```

```python
from common import *

L_T = 0
L_O = 51200
O_STR = 1168
SLOT = 32 * 1408
L_B0 = L_O + 16 * O_STR
L_B1 = L_B0 + SLOT
K2_LDS = L_B1 + SLOT
SLOTS = [L_B0, L_B1, 0]
L_RED = L_O


def bf16r(a, v):
    a(f"v_cvt_pk_bf16_f32 v{v}, v{v}, v{v}")
    a(f"v_and_b32 v{v}, 0xffff0000, v{v}")


def gen_k2(a):
    kernel_header(a, "k2_kernel")
    vm = Score(a, "vmcnt")
    lg = Score(a, "lgkmcnt")
    a("s_cmp_ge_u32 s2, 128")
    a("s_cbranch_scc1 K2_END")
    a(f"s_load_dwordx2 s[4:5], s[0:1], {KA['ws']}")
    a(f"s_load_dwordx2 s[6:7], s[0:1], {KA['wo']}")
    a(f"s_load_dwordx2 s[8:9], s[0:1], {KA['x']}")
    a("v_lshrrev_b32 v2, 6, v0")
    a("v_and_b32 v1, 63, v0")
    a("s_nop 0")
    a("v_readfirstlane_b32 s3, v2")
    a("s_waitcnt lgkmcnt(0)")
    a.srd(12, 6, 576 * 1152)
    a.srd(16, 8, S * D * 2)
    a.srd_ws(20, 4, WS_MOD, 3456 * 4)
    a.srd_ws(24, 4, WS_KV, KV_BYTES)
    a.srd_ws(28, 4, WS_PHIQ, S * 1152 * 2)
    a.srd_ws(32, 4, WS_X1, S * D * 2)
    a.srd_ws(36, 4, WS_H2, S * D * 2)
    a("v_and_b32 v3, 15, v1")
    a("v_lshrrev_b32 v4, 4, v1")
    a("s_lshl_b32 s40, s2, 4")
    a(f"s_mov_b32 s44, {magic(88)}")
    a("s_and_b32 s45, s3, 1")
    a("s_lshl_b32 s45, s45, 2")
    a("s_lshl_b32 s46, s3, 3")
    for j in range(11):
        a(f"v_add_u32 v8, {64*j}, v1")
        a("v_mul_hi_u32 v9, v8, s44")
        a("v_mul_u32_u24 v10, 88, v9")
        a("v_sub_u32 v10, v8, v10")
        a("v_and_b32 v11, 2, v9")
        a("v_add_u32 v11, s45, v11")
        a("v_sub_u32 v10, v10, v11")
        a("v_add_u32 v9, s46, v9")
        a("v_mul_u32_u24 v9, 1152, v9")
        a(f"v_lshl_add_u32 v{230+j}, v10, 4, v9")
        a("v_cmp_gt_u32 vcc, 72, v10")
        a("s_nop 1")
        a(f"v_cndmask_b32 v{230+j}, -1, v{230+j}, vcc")
    a("s_mul_i32 s47, s3, 11264")

    def dma(st):
        slot = SLOTS[st % 3]
        a(f"s_mov_b32 s48, {st*32*1152}")
        for j in range(11):
            a(f"s_add_u32 m0, s47, {slot + 1024*j}")
            a("s_nop 0")
            a(f"buffer_load_dwordx4 v{230+j}, s[12:15], s48 offen lds"); vm.issue(("dma", st))
    dma(0)
    dma(1)
    a("v_lshlrev_b32 v8, 4, v0")
    a("v_lshlrev_b32 v9, 3, v0")
    for half in range(2):
        js = range(0, 13) if half == 0 else range(13, 25)
        for j in js:
            a(f"s_mov_b32 s48, {4096*j}")
            a(f"buffer_load_dwordx4 {vr(24+4*(j-js[0]),4)}, v8, s[24:27], s48 offen"); vm.issue("kv")
        vm.wait("kv")
        for j in js:
            b = 24 + 4 * (j - js[0])
            a(f"v_cvt_pk_bf16_f32 v{b}, v{b}, v{b+1}")
            a(f"v_cvt_pk_bf16_f32 v{b+1}, v{b+2}, v{b+3}")
            a(f"ds_write_b64 v9, {vr(b,2)} offset:{L_T+2048*j}")
    a("v_add_u32 v8, s40, v3")
    a("v_mul_u32_u24 v8, 2304, v8")
    a("s_mul_i32 s48, s3, 576")
    a("v_mul_u32_u24 v9, 72, v4")
    a("v_add3_u32 v8, v8, v9, s48")
    for hl in range(2):
        for u in range(5):
            a(f"buffer_load_dwordx4 {vr(100+(hl*5+u)*4,4)}, v8, s[28:31], 0 offen offset:{hl*288+16*u}"); vm.issue("phi")
    a("s_waitcnt lgkmcnt(0)")
    a("s_barrier")
    a("v_lshrrev_b32 v9, 2, v3")
    a("v_and_b32 v10, 3, v1")
    a("v_cmp_eq_u32 s[50:51], v9, v4")
    a("v_mul_u32_u24 v11, 1600, v9")
    a("v_mul_u32_u24 v12, 80, v10")
    a("s_mul_i32 s48, s3, 12800")
    a("v_add3_u32 v11, v11, v12, s48")
    a(f"v_mul_u32_u24 v12, {O_STR}, v3")
    a("v_mul_u32_u24 v13, 36, v4")
    a("s_mul_i32 s48, s3, 288")
    a("v_add3_u32 v12, v12, v13, s48")
    vm.wait("phi")
    a("s_mov_b32 s49, 0x358637bd")
    for hl in range(2):
        AF = 24
        PACC = 160
        for t in range(5):
            for u in range(5):
                a(f"ds_read_b128 {vr(24+4*u,4)}, v11 offset:{L_T + hl*6400 + t*320 + 16*u}")
            a("s_waitcnt lgkmcnt(0)")
            for i in range(20):
                a(f"v_cndmask_b32 v{24+i}, 0, v{24+i}, s[50:51]")
            a.nop(2)
            for u in range(5):
                c = "0" if u == 0 else vr(PACC + 4 * t, 4)
                a(f"v_mfma_f32_16x16x32_bf16 {vr(PACC+4*t,4)}, {vr(24+4*u,4)}, {vr(100+(hl*5+u)*4,4)}, {c}")
        a.nop(10)
        den = PACC + 18
        bf16r(a, den)
        a(f"v_add_f32 v{den}, s49, v{den}")
        bf16r(a, den)
        a(f"v_rcp_f32 v{den}, v{den}")
        for j in range(0, 18, 2):
            a(f"v_cvt_pk_bf16_f32 v14, v{PACC+j}, v{PACC+j+1}")
            a(f"v_lshlrev_b32 v15, 16, v14")
            a(f"v_and_b32 v14, 0xffff0000, v14")
            a(f"v_mul_f32 v15, v15, v{den}")
            a(f"v_mul_f32 v14, v14, v{den}")
            a(f"v_cvt_pk_bf16_f32 v14, v15, v14")
            a(f"ds_write_b32 v12, v14 offset:{L_O + hl*144 + 2*j}")
    a("s_waitcnt lgkmcnt(0)")
    a("s_barrier")
    a(f"v_mul_u32_u24 v8, {O_STR}, v3")
    a("v_lshl_add_u32 v8, v4, 4, v8")
    OB = lambda ks: 150 + 4 * ks
    for ks in range(18):
        a(f"ds_read_b128 {vr(OB(ks),4)}, v8 offset:{L_O+64*ks}")
    a("s_waitcnt lgkmcnt(0)")
    a("s_barrier")
    dma(2)
    a("v_add_u32 v5, s40, v3")
    a("v_mul_u32_u24 v5, 1152, v5")
    a("s_mul_i32 s48, s3, 288")
    a("v_lshl_add_u32 v5, v4, 3, v5")
    a("v_add_u32 v5, s48, v5")
    for T in range(9):
        a(f"buffer_load_dwordx2 {vr(60+2*T,2)}, v5, s[16:19], 0 offen offset:{32*T}"); vm.issue("x")
    a("s_mul_i32 s48, s3, 576")
    a("v_lshlrev_b32 v6, 4, v4")
    a("v_add_u32 v6, s48, v6")
    a(f"s_mov_b32 s52, {2*2304}")
    for T in range(9):
        a(f"buffer_load_dwordx4 {vr(100+4*T,4)}, v6, s[20:23], s52 offen offset:{64*T}"); vm.issue("ga")
    a("v_lshrrev_b32 v9, 2, v3")
    a("v_and_b32 v10, 3, v1")
    a("v_lshl_add_u32 v11, v4, 3, v9")
    a("v_mul_u32_u24 v11, 1408, v11")
    a("v_lshrrev_b32 v12, 1, v9")
    a("v_lshl_add_u32 v11, v12, 5, v11")
    a("v_and_b32 v12, 1, v4")
    a("v_lshl_add_u32 v11, v12, 6, v11")
    a("v_lshl_add_u32 v11, v10, 3, v11")
    a("s_mul_i32 s48, s3, 288")
    a("v_add_u32 v11, s48, v11")
    for i in range(3):
        a(f"v_add_u32 v{224+i}, {SLOTS[i]}, v11")
    ACC = lambda T: 24 + 4 * T
    FR = lambda i: 8 + 4 * (i & 3)
    cnt = 0
    for st in range(18):
        vm.wait(("dma", st))
        a("s_barrier")
        if 1 <= st and st + 2 < 18:
            dma(st + 2)
        ad = f"v{224 + st % 3}"

        def rd(T):
            b = FR(cnt + T)
            a(f"ds_read_b64_tr_b16 {vr(b,2)}, {ad} offset:{32*T}"); lg.issue(("a", st, T))
            a(f"ds_read_b64_tr_b16 {vr(b+2,2)}, {ad} offset:{32*T+4*1408}"); lg.issue(("a", st, T))
        for T in range(3):
            rd(T)
        for T in range(9):
            if T + 3 < 9:
                rd(T + 3)
            lg.wait(("a", st, T))
            c = "0" if st == 0 else vr(ACC(T), 4)
            a(f"v_mfma_f32_16x16x32_bf16 {vr(ACC(T),4)}, {vr(FR(cnt+T),4)}, {vr(OB(st),4)}, {c}")
        cnt += 9
    vm.wait_all()
    a.nop(10)
    for T in range(9):
        c = ACC(T)
        for h in range(2):
            a(f"v_cvt_pk_bf16_f32 v8, v{c+2*h}, v{c+2*h+1}")
            a("v_lshlrev_b32 v9, 16, v8")
            a("v_and_b32 v8, 0xffff0000, v8")
            a(f"v_mul_f32 v9, v9, v{100+4*T+2*h}")
            a(f"v_mul_f32 v8, v8, v{100+4*T+2*h+1}")
            a("v_cvt_pk_bf16_f32 v8, v9, v8")
            a("v_lshlrev_b32 v9, 16, v8")
            a("v_and_b32 v8, 0xffff0000, v8")
            a(f"v_lshlrev_b32 v10, 16, v{60+2*T+h}")
            a(f"v_and_b32 v11, 0xffff0000, v{60+2*T+h}")
            a("v_add_f32 v9, v9, v10")
            a("v_add_f32 v8, v8, v11")
            a(f"v_cvt_pk_bf16_f32 v{60+2*T+h}, v9, v8")
            a(f"v_lshlrev_b32 v{c+2*h}, 16, v{60+2*T+h}")
            a(f"v_and_b32 v{c+2*h+1}, 0xffff0000, v{60+2*T+h}")
    for T in range(9):
        a(f"buffer_store_dwordx2 {vr(60+2*T,2)}, v5, s[32:35], 0 offen offset:{32*T}"); vm.issue("st")
    a(f"s_mov_b32 s52, {3*2304}")
    a(f"s_mov_b32 s53, {4*2304}")
    for T in range(9):
        a(f"buffer_load_dwordx4 {vr(140+4*T,4)}, v6, s[20:23], s52 offen offset:{64*T}"); vm.issue("sb")
        a(f"buffer_load_dwordx4 {vr(176+4*T,4)}, v6, s[20:23], s53 offen offset:{64*T}"); vm.issue("sb")
    a("v_xor_b32 v13, 16, v1")
    a("v_lshlrev_b32 v13, 2, v13")
    a("v_xor_b32 v14, 32, v1")
    a("v_lshlrev_b32 v14, 2, v14")
    a("s_lshl_b32 s48, s3, 6")
    a("v_lshlrev_b32 v15, 2, v3")
    a("v_add_u32 v16, s48, v15")

    def rowred(off):
        a("ds_bpermute_b32 v17, v13, v12")
        a("s_waitcnt lgkmcnt(0)")
        a("v_add_f32 v12, v12, v17")
        a("ds_bpermute_b32 v17, v14, v12")
        a("s_waitcnt lgkmcnt(0)")
        a("v_add_f32 v12, v12, v17")
        a(f"ds_write_b32 v16, v12 offset:{L_RED+off}")
        a("s_waitcnt lgkmcnt(0)")
        a("s_barrier")
        for w in range(4):
            a(f"ds_read_b32 v{18+w}, v15 offset:{L_RED+off+64*w}")
        a("s_waitcnt lgkmcnt(0)")
        a("v_add_f32 v12, v18, v19")
        a("v_add_f32 v17, v20, v21")
        a("v_add_f32 v12, v12, v17")
    a("v_mov_b32 v12, 0")
    for i in range(36):
        a(f"v_add_f32 v12, v12, v{24+i}")
    rowred(0)
    a("s_mov_b32 s49, 0x3ae38e39")
    a("v_mul_f32 v22, s49, v12")
    a("v_mov_b32 v12, 0")
    for i in range(36):
        a(f"v_sub_f32 v8, v{24+i}, v22")
        a("v_fmac_f32 v12, v8, v8")
    rowred(256)
    a("v_mul_f32 v23, s49, v12")
    bf16r(a, 22)
    bf16r(a, 23)
    a("v_add_f32 v23, 0x3727c5ac, v23")
    bf16r(a, 23)
    a("v_sqrt_f32 v23, v23")
    a("s_nop 0")
    bf16r(a, 23)
    a("v_rcp_f32 v23, v23")
    vm.wait("sb")
    for T in range(9):
        c = ACC(T)
        for h in range(2):
            a(f"v_sub_f32 v8, v{c+2*h}, v22")
            a(f"v_sub_f32 v9, v{c+2*h+1}, v22")
            a("v_cvt_pk_bf16_f32 v8, v8, v9")
            a("v_and_b32 v9, 0xffff0000, v8")
            a("v_lshlrev_b32 v8, 16, v8")
            a("v_mul_f32 v8, v8, v23")
            a("v_mul_f32 v9, v9, v23")
            a("v_cvt_pk_bf16_f32 v8, v8, v9")
            a("v_and_b32 v9, 0xffff0000, v8")
            a("v_lshlrev_b32 v8, 16, v8")
            a(f"v_mul_f32 v8, v8, v{176+4*T+2*h}")
            a(f"v_mul_f32 v9, v9, v{176+4*T+2*h+1}")
            a("v_cvt_pk_bf16_f32 v8, v8, v9")
            a("v_and_b32 v9, 0xffff0000, v8")
            a("v_lshlrev_b32 v8, 16, v8")
            a(f"v_add_f32 v8, v8, v{140+4*T+2*h}")
            a(f"v_add_f32 v9, v9, v{140+4*T+2*h+1}")
            a(f"v_cvt_pk_bf16_f32 v{78+2*T+h}, v8, v9")
    a("s_nop 1")
    for T in range(9):
        a(f"buffer_store_dwordx2 {vr(78+2*T,2)}, v5, s[36:39], 0 offen offset:{32*T}")
    a.label("K2_END")
    a("s_endpgm")
    return kernel_desc("k2_kernel", 256, 64), f"; @launch kernel=k2_kernel grid=(128,1,1) block=(256,1,1) lds={K2_LDS}"
```

```python
from common import *

UPOFF = 9344
SLOT = 18688
NB = 8
K3_LDS = SLOT * NB
NST = 18


def gen_k3(a):
    kernel_header(a, "k3_kernel")
    vm = Score(a, "vmcnt")
    lg = Score(a, "lgkmcnt")
    XF = lambda ks: 100 + 4 * ks
    ACC = lambda t: 24 + 16 * t
    FR = lambda i: 8 + 4 * (i & 3)
    a("s_cmp_ge_u32 s2, 256")
    a("s_cbranch_scc1 K3_END")
    a(f"s_load_dwordx2 s[4:5], s[0:1], {KA['ws']}")
    a(f"s_load_dwordx2 s[6:7], s[0:1], {KA['wg']}")
    a(f"s_load_dwordx2 s[8:9], s[0:1], {KA['wu']}")
    a("v_lshrrev_b32 v2, 6, v0")
    a("v_and_b32 v1, 63, v0")
    a("s_nop 0")
    a("v_readfirstlane_b32 s3, v2")
    a("s_and_b32 s40, s2, 7")
    a("s_lshr_b32 s41, s2, 3")
    a("s_waitcnt lgkmcnt(0)")
    a("s_cmp_ge_u32 s3, 4")
    a("s_cselect_b32 s6, s8, s6")
    a("s_cselect_b32 s7, s9, s7")
    a.srd(12, 6, 576 * 9216)
    a.srd_ws(16, 4, WS_H2, S * D * 2)
    a.srd_ws(20, 4, WS_HH, S * DF * 2)
    a("s_lshl_b32 s42, s40, 8")
    a("s_lshl_b32 s43, s3, 5")
    a("s_add_u32 s42, s42, s43")
    a("v_and_b32 v3, 31, v1")
    a("v_lshrrev_b32 v4, 5, v1")
    a("v_add_u32 v5, s42, v3")
    a("v_mul_u32_u24 v6, 1152, v5")
    a("v_lshl_add_u32 v6, v4, 4, v6")
    a("s_and_b32 s44, s3, 3")
    a("s_lshr_b32 s45, s3, 2")
    a(f"s_mov_b32 s46, {magic(6)}")
    a("s_mul_i32 s47, s44, 24")
    a("s_mul_i32 s48, s41, 288")
    for j in range(3):
        a(f"v_add_u32 v8, {64*j}, v1")
        a("v_mul_hi_u32 v9, v8, s46")
        a("v_mul_u32_u24 v10, 6, v9")
        a("v_sub_u32 v10, v8, v10")
        a("v_add_u32 v9, s47, v9")
        a("v_mul_u32_u24 v9, 9216, v9")
        a("v_lshl_add_u32 v9, v10, 4, v9")
        a(f"v_add_u32 v{244+j}, s48, v9")
    a(f"s_mul_i32 s49, s44, 2304")
    a(f"s_mul_i32 s50, s45, {UPOFF}")
    a("s_add_u32 s49, s49, s50")

    def dma(st):
        q, c = divmod(st, 6)
        slot = (st % NB) * SLOT
        a(f"s_mov_b32 s51, {c*96*9216 + q*96}")
        for j in range(3):
            if j == 2:
                a("s_mov_b64 exec, 0xffff")
            a(f"s_add_u32 m0, s49, {slot + 1024*j}")
            a("s_nop 0")
            a(f"buffer_load_dwordx4 v{244+j}, s[12:15], s51 offen lds"); vm.issue(("dma", st))
        a("s_mov_b64 exec, -1")
    dma(0)
    dma(1)
    for ks in range(36):
        a(f"buffer_load_dwordx4 {vr(XF(ks),4)}, v6, s[16:19], 0 offen offset:{32*ks}"); vm.issue("x")
    for st in range(2, NB - 1):
        dma(st)
    a("v_lshrrev_b32 v8, 4, v1")
    a("v_and_b32 v9, 1, v8")
    a(f"v_mul_u32_u24 v9, {UPOFF}, v9")
    a("v_lshrrev_b32 v8, 1, v8")
    a("v_and_b32 v10, 15, v1")
    a("v_lshrrev_b32 v10, 2, v10")
    a("v_lshl_add_u32 v8, v8, 3, v10")
    a("v_mul_u32_u24 v8, 96, v8")
    a("v_and_b32 v10, 3, v1")
    a("v_lshl_add_u32 v8, v10, 3, v8")
    a("v_add_u32 v247, v8, v9")
    a("v_mul_u32_u24 v249, 9216, v5")
    a("v_lshl_add_u32 v249, v4, 4, v249")
    a("v_add_u32 v249, s48, v249")
    a("s_mov_b32 s52, 0xc0135761")
    a("s_mov_b32 s53, 0xbdd2d3e8")
    a("v_mov_b32 v250, s52")

    ops = []
    for st in range(NST):
        q, c = divmod(st, 6)
        if c == 5 or (c == 0 and q > 0):
            o = [(st, k, t) for t in range(3) for k in range(6)]
        else:
            o = [(st, k, t) for k in range(6) for t in range(3)]
        ops += o
    E = 72

    def epi(q, t):
        c = ACC(t)
        L = []
        for i in range(8):
            g = c + i
            u = c + 8 + i
            x = E + i
            L.append(f"v_mul_f32 v{x}, v{g}, v{g}")
            L.append(f"v_fma_f32 v{x}, v{x}, s53, v250")
            L.append(f"v_mul_f32 v{x}, v{x}, v{g}")
        for i in range(8):
            L.append(f"v_exp_f32 v{E+i}, v{E+i}")
        for i in range(8):
            L.append(f"v_add_f32 v{E+i}, 1.0, v{E+i}")
        for i in range(8):
            L.append(f"v_rcp_f32 v{E+i}, v{E+i}")
        for i in range(8):
            L.append(f"v_mul_f32 v{E+8+i}, v{c+i}, v{c+8+i}")
        for i in range(8):
            L.append(f"v_mul_f32 v{E+i}, v{E+i}, v{E+8+i}")
        for i in range(4):
            L.append(f"v_cvt_pk_bf16_f32 v{E+16+i}, v{E+2*i}, v{E+2*i+1}")
        L.append("s_nop 1")
        L.append(f"v_permlane32_swap_b32 v{E+16}, v{E+18}")
        L.append(f"v_permlane32_swap_b32 v{E+17}, v{E+19}")
        L.append(("st", f"buffer_store_dwordx4 {vr(E+16,4)}, v249, s[20:23], 0 offen offset:{96*q+32*t}"))
        return L
    nops = len(ops)
    extra = {i: [] for i in range(nops + 1)}
    for q in range(3):
        base = (6 * q + 5) * 18
        starts = [base + 10, base + 16, base + 24]
        ends = [base + 16, base + 24, base + 30]
        for t in range(3):
            L = epi(q, t)
            s0, s1 = starts[t], ends[t]
            if q == 2:
                s0 = min(s0, nops)
                s1 = min(s1, nops)
            n = max(s1 - s0, 1)
            per = -(-len(L) // n)
            for k in range(n):
                extra[min(s0 + k, nops)] += L[k * per:(k + 1) * per]

    def emit_extra(i):
        for x in extra[i]:
            if isinstance(x, tuple):
                a(x[1]); vm.issue("st")
            else:
                a(x)

    def rd(n):
        st, k, t = ops[n]
        b = FR(n)
        off = k * 1536 + 32 * t
        ad = "v248" if (st & 1) == 0 else "v251"
        a(f"ds_read_b64_tr_b16 {vr(b,2)}, {ad} offset:{off}"); lg.issue(("a", n))
        a(f"ds_read_b64_tr_b16 {vr(b+2,2)}, {ad} offset:{off+384}"); lg.issue(("a", n))

    def setbase(st):
        ad = "v248" if (st & 1) == 0 else "v251"
        a(f"v_add_u32 {ad}, {(st % NB) * SLOT}, v247")

    vm.wait(("dma", 0))
    a("s_barrier")
    setbase(0)
    for n in range(3):
        rd(n)
    for n in range(nops):
        st, k, t = ops[n]
        if n % 18 == 0:
            if st + 1 < NST:
                vm.wait(("dma", st + 1))
            if st == 0:
                vm.wait("x")
            a("s_barrier")
            if st >= 1 and st - 1 + NB < NST:
                dma(st - 1 + NB)
            elif st == 0 and NB - 1 < NST:
                dma(NB - 1)
            if st + 1 < NST:
                setbase(st + 1)
        if n + 3 < nops:
            rd(n + 3)
        lg.wait(("a", n))
        q, c = divmod(st, 6)
        first = (c == 0 and k == 0)
        cc = "0" if first else vr(ACC(t), 16)
        a(f"v_mfma_f32_32x32x16_bf16 {vr(ACC(t),16)}, {vr(FR(n),4)}, {vr(XF(6*c+k),4)}, {cc}")
        if n + 1 < nops:
            emit_extra(n + 1)
    a.nop(14)
    emit_extra(nops)
    a.label("K3_END")
    a("s_endpgm")
    return kernel_desc("k3_kernel", 256, 64), f"; @launch kernel=k3_kernel grid=(256,1,1) block=(512,1,1) lds={K3_LDS}"
```

```python
from common import *

SLOT = 128 * 288
NB = 4
K4_LDS = SLOT * NB
NST = 9


def gen_k4(a):
    kernel_header(a, "k4_kernel")
    vm = Score(a, "vmcnt")
    lg = Score(a, "lgkmcnt")
    ACC = lambda T, p: 40 + (T * 2 + p) * 4
    BF = lambda st, kk, p: 112 + ((st % 3) * 4 + kk * 2 + p) * 4
    FR = lambda i: 8 + 4 * (i % 6)
    a("s_cmp_ge_u32 s2, 256")
    a("s_cbranch_scc1 K4_END")
    a(f"s_load_dwordx2 s[4:5], s[0:1], {KA['ws']}")
    a(f"s_load_dwordx2 s[6:7], s[0:1], {KA['wd']}")
    a("v_lshrrev_b32 v2, 6, v0")
    a("v_and_b32 v1, 63, v0")
    a("s_nop 0")
    a("v_readfirstlane_b32 s3, v2")
    a("s_and_b32 s40, s2, 15")
    a("s_lshr_b32 s41, s2, 4")
    a("s_and_b32 s42, s41, 3")
    a("s_lshr_b32 s41, s41, 2")
    a("s_and_b32 s43, s3, 3")
    a("s_lshr_b32 s44, s3, 2")
    a("s_waitcnt lgkmcnt(0)")
    a.srd(12, 6, DF * 1152)
    a.srd_ws(16, 4, WS_HH, S * DF * 2)
    a.srd_ws(20, 4, WS_PART, 4 * S * D * 4)
    a("v_and_b32 v3, 15, v1")
    a("v_lshrrev_b32 v4, 4, v1")
    a(f"s_mov_b32 s45, {magic(18)}")
    a("s_lshl_b32 s46, s3, 4")
    a("s_mul_i32 s47, s41, 1152*1152")
    a("s_mul_i32 s48, s42, 288")
    a("s_add_u32 s47, s47, s48")
    for j in range(5):
        a(f"v_add_u32 v8, {64*j}, v1")
        a("v_mul_hi_u32 v9, v8, s45")
        a("v_mul_u32_u24 v10, 18, v9")
        a("v_sub_u32 v10, v8, v10")
        a("v_add_u32 v11, 10, v10")
        a("v_subrev_u32 v12, 18, v11")
        a("v_cmp_gt_u32 vcc, 18, v11")
        a("s_nop 1")
        a("v_cndmask_b32 v11, v12, v11, vcc")
        a("v_and_b32 v12, 8, v9")
        a("v_cmp_eq_u32 vcc, 0, v12")
        a("s_nop 1")
        a("v_cndmask_b32 v10, v11, v10, vcc")
        a("v_add_u32 v9, s46, v9")
        a("v_mul_u32_u24 v9, 1152, v9")
        a("v_lshl_add_u32 v9, v10, 4, v9")
        a(f"v_add_u32 v{170+j}, s47, v9")
    a("s_mul_i32 s49, s3, 4608")

    def dma(st):
        slot = (st % NB) * SLOT
        a(f"s_mov_b32 s51, {st*128*1152}")
        for j in range(5):
            if j == 4:
                a("s_mov_b64 exec, 0xffffffff")
            a(f"s_add_u32 m0, s49, {slot + 1024*j}")
            a("s_nop 0")
            a(f"buffer_load_dwordx4 v{170+j}, s[12:15], s51 offen lds"); vm.issue(("dma", st))
        a("s_mov_b64 exec, -1")
    a("s_lshl_b32 s45, s40, 7")
    a("s_lshl_b32 s46, s43, 5")
    a("s_add_u32 s45, s45, s46")
    a("v_add_u32 v7, s45, v3")
    a("v_mul_u32_u24 v5, 9216, v7")
    a("v_lshl_add_u32 v5, v4, 4, v5")
    a("s_mul_i32 s46, s41, 2304")
    a("s_lshl_b32 s47, s44, 7")
    a("s_add_u32 s46, s46, s47")
    a("v_add_u32 v5, s46, v5")
    a(f"v_add_u32 v6, {16*9216}, v5")

    def bld(st):
        for kk in range(2):
            for p in range(2):
                a(f"buffer_load_dwordx4 {vr(BF(st,kk,p),4)}, v{5+p}, s[16:19], 0 offen offset:{256*st+64*kk}"); vm.issue(("b", st))
    bld(0)
    dma(0)
    bld(1)
    dma(1)
    dma(2)
    a("v_lshrrev_b32 v9, 2, v3")
    a("v_and_b32 v10, 3, v1")
    a("v_lshl_add_u32 v11, v4, 3, v9")
    a("s_lshl_b32 s46, s44, 6")
    a("v_add_u32 v11, s46, v11")
    a("v_mul_u32_u24 v11, 288, v11")
    a("v_lshl_add_u32 v11, v10, 3, v11")
    a("v_and_b32 v12, 1, v4")
    a("v_lshl_add_u32 v13, v12, 7, v11")
    a("v_mul_u32_u24 v12, 160, v12")
    a("v_sub_u32 v14, v11, v12")
    for i in range(NB):
        a(f"v_add_u32 v{176+2*i}, {i*SLOT}, v13")
        a(f"v_add_u32 v{177+2*i}, {i*SLOT}, v14")
    ops = [(st, kk, T) for st in range(NST) for kk in range(2) for T in range(9)]
    nops = len(ops)

    def rd(n):
        st, kk, T = ops[n]
        b = FR(n)
        ad = 176 + 2 * (st % NB) + (1 if T >= 5 else 0)
        off = kk * 32 * 288 + 32 * T
        a(f"ds_read_b64_tr_b16 {vr(b,2)}, v{ad} offset:{off}"); lg.issue(("a", n))
        a(f"ds_read_b64_tr_b16 {vr(b+2,2)}, v{ad} offset:{off+4*288}"); lg.issue(("a", n))
    LA = 4
    vm.wait(("dma", 0))
    a("s_barrier")
    for n in range(LA):
        rd(n)
    for n in range(nops):
        st, kk, T = ops[n]
        if n % 18 == 0:
            if st + 1 < NST:
                vm.wait(("dma", st + 1))
            vm.wait(("b", st))
            a("s_barrier")
            if st + 2 < NST:
                bld(st + 2)
            if st >= 1 and st - 1 + NB < NST:
                dma(st - 1 + NB)
            elif st == 0:
                dma(NB - 1)
        if n + LA < nops:
            rd(n + LA)
        lg.wait(("a", n))
        for p in range(2):
            c = "0" if (st == 0 and kk == 0) else vr(ACC(T, p), 4)
            a(f"v_mfma_f32_16x16x32_bf16 {vr(ACC(T,p),4)}, {vr(FR(n),4)}, {vr(BF(st,kk,p),4)}, {c}")
    a.nop(10)
    a("s_barrier")
    a("s_mul_i32 s46, s43, 18432")
    a("v_lshlrev_b32 v8, 4, v1")
    a("v_add_u32 v8, s46, v8")
    a("s_cmp_eq_u32 s44, 0")
    a("s_cbranch_scc1 K4_RED")
    for i in range(18):
        a(f"ds_write_b128 v8, {vr(40+4*i,4)} offset:{1024*i}")
    a("s_waitcnt lgkmcnt(0)")
    a("s_barrier")
    a("s_endpgm")
    a.label("K4_RED")
    a("s_barrier")
    for i in range(18):
        a(f"ds_read_b128 {vr(112+4*i,4)}, v8 offset:{1024*i}")
    a("v_mul_u32_u24 v9, 2304, v7")
    a("v_lshl_add_u32 v9, v4, 4, v9")
    a(f"s_mul_i32 s46, s41, {S*D*4}")
    a("s_mul_i32 s47, s42, 576")
    a("s_add_u32 s46, s46, s47")
    a("v_add_u32 v9, s46, v9")
    a(f"v_add_u32 v10, {16*2304}, v9")
    a("s_waitcnt lgkmcnt(0)")
    for i in range(72):
        a(f"v_add_f32 v{40+i}, v{40+i}, v{112+i}")
    for T in range(9):
        for p in range(2):
            a(f"buffer_store_dwordx4 {vr(ACC(T,p),4)}, v{9+p}, s[20:23], 0 offen offset:{64*T}")
    a.label("K4_END")
    a("s_endpgm")
    return kernel_desc("k4_kernel", 192, 64), f"; @launch kernel=k4_kernel grid=(256,1,1) block=(512,1,1) lds={K4_LDS}"
```

```python
import sys
from common import *
import k0, k1, k2, k3, k4

HDR = open("adaLN_cond__linear_kernel_hedgehog__glu_gated_geglu__prompt.s.ref").read().split("; Override launch geometry")[0]

def build(which=("k0","k1","k2","k3","k4","k5")):
    a = Asm()
    descs, launches = [], []
    gens = dict(k0=k0.gen_k0, k1=k1.gen_k1, k2=k2.gen_k2, k3=k3.gen_k3, k4=k4.gen_k4, k5=k0.gen_k5)
    for n in which:
        d, l = gens[n](a)
        descs.append(d); launches.append(l)
    out = HDR + "\n".join(launches) + "\n"
    out += '.amdgcn_target "amdgcn-amd-amdhsa--gfx950"\n.text\n'
    out += a.text()
    out += '.section .rodata,"a"\n'
    for d in descs:
        out += ".p2align 6\n" + d
    return out

if __name__ == "__main__":
    s = build()
    open("adaLN_cond__linear_kernel_hedgehog__glu_gated_geglu__prompt.s","w").write(s)
    print(len(s))
```

```python
import os
S, D, H, DH, DF = 2048, 576, 32, 18, 4608

WS_MOD = 0
WS_KV = 16384
WS_XN = 131072
WS_PHIQ = WS_XN + S * D * 2
PHIQ_BYTES = 128 * 40 * 1024
WS_X1 = WS_PHIQ + PHIQ_BYTES
WS_H2 = WS_X1 + S * D * 2
WS_HH = WS_H2 + S * D * 2
WS_PART = WS_HH + S * DF * 2
WS_W1 = WS_PART + 4 * S * D * 4
W1_BYTES = 16 * 147456
WS_W3 = WS_W1 + W1_BYTES
W3_BYTES = 2 * 32 * 3 * 576 * 96
WS_W4 = WS_W3 + W3_BYTES
W4_BYTES = 4 * 4608 * 288
WS_W2 = WS_W4 + W4_BYTES
W2_BYTES = 18 * 36 * 1024
WS_END = WS_W2 + W2_BYTES
KV_BYTES = 32 * 20 * 40 * 4

KA = dict(x=0, wqkv=8, wphi=16, wo=24, bx=32, wg=40, wu=48, wd=56, c=64, wmod=72, out=80, dbg=88, ws=96)


def magic(d):
    return (2 ** 32 + d - 1) // d


class Asm:
    def __init__(self):
        self.L = []
        self.nlab = 0

    def __call__(self, s):
        for line in s.strip("\n").split("\n"):
            self.L.append("    " + line.strip())

    def label(self, n):
        self.L.append(n + ":")

    def newlabel(self, p="L"):
        self.nlab += 1
        return f"{p}_{self.nlab}"

    def c(self, s):
        self.L.append("    ; " + s)

    def nop(self, n):
        while n > 0:
            k = min(n, 16)
            self(f"s_nop {k-1}")
            n -= k

    def srd(self, d, blo, size):
        self(f"s_mov_b32 s{d}, s{blo}")
        self(f"s_and_b32 s{d+1}, s{blo+1}, 0xffff")
        self(f"s_mov_b32 s{d+2}, {size}")
        self(f"s_mov_b32 s{d+3}, 0x00020000")

    def srd_ws(self, d, ws, off, size):
        self(f"s_add_u32 s{d}, s{ws}, {off}")
        self(f"s_addc_u32 s{d+1}, s{ws+1}, 0")
        self(f"s_and_b32 s{d+1}, s{d+1}, 0xffff")
        self(f"s_mov_b32 s{d+2}, {size}")
        self(f"s_mov_b32 s{d+3}, 0x00020000")

    def text(self):
        return "\n".join(self.L) + "\n"


class Score:
    def __init__(self, a, kind):
        self.a = a
        self.kind = kind
        self.q = []
        self.max = 63 if kind == "vmcnt" else 15

    def issue(self, tag):
        self.q.append(tag)

    def wait(self, tag):
        idx = None
        for i, t in enumerate(self.q):
            if t == tag:
                idx = i
        if idx is None:
            return
        n = len(self.q) - 1 - idx
        if n > self.max:
            n = self.max
        self.a(f"s_waitcnt {self.kind}({n})")
        self.q = self.q[len(self.q) - n:] if n > 0 else []

    def wait_all(self):
        self.a(f"s_waitcnt {self.kind}(0)")
        self.q = []


def vr(b, n=1):
    return f"v{b}" if n == 1 else f"v[{b}:{b+n-1}]"


def sr(b, n=1):
    return f"s{b}" if n == 1 else f"s[{b}:{b+n-1}]"


def kernel_header(a, name):
    a.L.append(f".globl {name}")
    a.L.append(".p2align 8")
    a.L.append(f".type {name},@function")
    a.L.append(f"{name}:")


def kernel_desc(name, vgpr, sgpr=96, accum=None):
    if os.environ.get('STAMP'): sgpr = 102
    if accum is None:
        accum = (min(vgpr, 256) + 3) // 4 * 4
    return f""".amdhsa_kernel {name}
  .amdhsa_next_free_vgpr {vgpr}
  .amdhsa_next_free_sgpr {sgpr}
  .amdhsa_accum_offset {accum}
  .amdhsa_group_segment_fixed_size 0
  .amdhsa_kernarg_size 104
  .amdhsa_user_sgpr_count 2
  .amdhsa_user_sgpr_kernarg_segment_ptr 1
  .amdhsa_system_sgpr_workgroup_id_x 1
  .amdhsa_float_denorm_mode_32 3
.end_amdhsa_kernel
"""


import os
STAMP = os.environ.get('STAMP', '')


class Stamper:
    def __init__(self, a, name):
        self.a = a
        self.on = name in STAMP.split(',')
        self.n = 0

    def __call__(self, lg=None):
        if not self.on:
            return
        a = self.a
        if lg is not None:
            lg.wait_all()
        a("s_memtime s[98:99]")
        a("s_waitcnt lgkmcnt(0)")
        a(f"s_mov_b32 s{64+self.n}, s98")
        self.n += 1

    def dump(self, wave_sgpr, endlabel, wg=37, wave=0):
        if not self.on:
            return
        a = self.a
        a("s_waitcnt vmcnt(0) lgkmcnt(0)")
        self()
        a(f"s_load_dwordx2 s[6:7], s[0:1], {KA['dbg']}")
        a("s_waitcnt lgkmcnt(0)")
        a.srd(12, 6, 256)
        a(f"s_cmp_eq_u32 s2, {wg}")
        a(f"s_cbranch_scc0 {endlabel}")
        a(f"s_cmp_eq_u32 s{wave_sgpr}, {wave}")
        a(f"s_cbranch_scc0 {endlabel}")
        a("s_mov_b64 exec, -1")
        for i in range(self.n):
            a(f"v_mov_b32 v8, s{64+i}")
            a(f"v_mov_b32 v9, {4*i}")
            a("buffer_store_dword v8, v9, s[12:15], 0 offen")
```

```python
from common import *

NMOD = 108
NLN = 64
GPW = 2048
NC1 = -(-(W1_BYTES // 16) // GPW)
NC3 = (W3_BYTES // 32) // GPW
NC4 = (W4_BYTES // 16) // GPW
NK0 = NMOD + NLN + NC1
LOG2E = 0x3fb8aa3b


def bf16r(a, v, tmp=None):
    a(f"v_cvt_pk_bf16_f32 v{v}, v{v}, v{v}")
    a(f"v_and_b32 v{v}, 0xffff0000, v{v}")


def gen_k0(a):
    kernel_header(a, "k0_kernel")
    a(f"s_cmp_ge_u32 s2, {NK0}")
    a("s_cbranch_scc1 K0_END")
    a(f"s_cmp_ge_u32 s2, {NMOD+NLN}")
    a("s_cbranch_scc1 K0_COPY")
    a(f"s_load_dwordx2 s[4:5], s[0:1], {KA['ws']}")
    a(f"s_load_dwordx2 s[6:7], s[0:1], {KA['c']}")
    a(f"s_load_dwordx2 s[8:9], s[0:1], {KA['wmod']}")
    a(f"s_load_dwordx2 s[10:11], s[0:1], {KA['x']}")
    a("s_waitcnt lgkmcnt(0)")
    a(f"s_cmp_ge_u32 s2, {NMOD}")
    a("s_cbranch_scc1 K0_LN")
    a.srd(12, 6, 1152)
    a.srd(16, 8, 576 * 6912)
    a.srd_ws(20, 4, WS_MOD, 3456 * 4)
    a("v_and_b32 v1, 15, v0")
    a("v_lshrrev_b32 v2, 4, v0")
    a("v_mul_u32_u24 v3, 6912, v2")
    a("v_lshl_add_u32 v3, v1, 2, v3")
    a("s_lshl_b32 s24, s2, 6")
    a("v_add_u32 v3, s24, v3")
    a("s_mov_b32 s25, 0")
    for i in range(36):
        a(f"buffer_load_dword v{10+i}, v3, s[16:19], s25 offen")
        a(f"s_add_u32 s25, s25, {16*6912}")
    a("v_lshlrev_b32 v4, 1, v0")
    a("buffer_load_ushort v50, v4, s[12:15], 0 offen")
    a("buffer_load_ushort v51, v4, s[12:15], 0 offen offset:512")
    a("buffer_load_ushort v52, v4, s[12:15], 0 offen offset:1024")
    a("s_waitcnt vmcnt(0)")
    a(f"s_mov_b32 s26, {LOG2E}")
    for j in range(3):
        v = 50 + j
        a(f"v_lshlrev_b32 v{v}, 16, v{v}")
        a(f"v_mul_f32 v53, s26, v{v}")
        a("v_sub_f32 v53, 0, v53")
        a("v_exp_f32 v53, v53")
        a("s_nop 0")
        a("v_add_f32 v53, 1.0, v53")
        a("v_rcp_f32 v53, v53")
        a("s_nop 0")
        a(f"v_mul_f32 v{v}, v{v}, v53")
        bf16r(a, v)
    a("v_lshlrev_b32 v4, 2, v0")
    a("ds_write_b32 v4, v50")
    a("ds_write_b32 v4, v51 offset:1024")
    a("ds_write_b32 v4, v52 offset:2048")
    a("s_waitcnt lgkmcnt(0)")
    a("s_barrier")
    a("v_lshlrev_b32 v4, 2, v2")
    for i in range(36):
        a(f"ds_read_b32 v{60+i}, v4 offset:{64*i}")
    a("v_mov_b32 v98, 0")
    a("v_mov_b32 v99, 0")
    a("s_waitcnt lgkmcnt(0)")
    for i in range(36):
        a(f"v_lshlrev_b32 v7, 16, v{10+i}")
        a(f"v_and_b32 v8, 0xffff0000, v{10+i}")
        a(f"v_fmac_f32 v98, v7, v{60+i}")
        a(f"v_fmac_f32 v99, v8, v{60+i}")
    a("v_lshlrev_b32 v4, 7, v2")
    a("v_lshl_add_u32 v4, v1, 3, v4")
    a("ds_write_b64 v4, v[98:99] offset:4096")
    a("s_waitcnt lgkmcnt(0)")
    a("s_barrier")
    a("v_cmp_gt_u32 vcc, 32, v0")
    a("s_and_saveexec_b64 s[28:29], vcc")
    a("s_cbranch_execz K0_END")
    a("v_lshlrev_b32 v4, 2, v0")
    for i in range(16):
        a(f"ds_read_b32 v{10+i}, v4 offset:{4096+128*i}")
    a("s_waitcnt lgkmcnt(0)")
    for i in range(1, 16):
        a(f"v_add_f32 v10, v10, v{10+i}")
    bf16r(a, 10)
    a("s_mov_b32 s27, 0")
    a("s_cmp_ge_u32 s2, 18")
    a("s_cselect_b32 s27, 1, 0")
    a("s_cmp_ge_u32 s2, 36")
    a("s_cselect_b32 s27, 0, s27")
    a("s_cmp_ge_u32 s2, 72")
    a("s_cselect_b32 s27, 1, s27")
    a("s_cmp_ge_u32 s2, 90")
    a("s_cselect_b32 s27, 0, s27")
    a("s_cmp_eq_u32 s27, 0")
    a("s_cbranch_scc1 K0_MODST")
    a("v_add_f32 v10, 1.0, v10")
    bf16r(a, 10)
    a.label("K0_MODST")
    a("s_lshl_b32 s24, s2, 7")
    a("v_add_u32 v4, s24, v4")
    a("buffer_store_dword v10, v4, s[20:23], 0 offen")
    a("s_endpgm")
    a.label("K0_LN")
    a(f"s_sub_u32 s3, s2, {NMOD}")
    a.srd(12, 10, S * D * 2)
    a.srd_ws(16, 4, WS_XN, S * D * 2)
    a.srd_ws(20, 4, WS_KV, KV_BYTES)
    a("s_lshl_b32 s24, s3, 12")
    a("v_lshl_add_u32 v1, v0, 4, s24")
    a("v_mov_b32 v4, 0")
    a("v_mov_b32 v5, 0")
    a("v_mov_b32 v6, 0")
    a("v_mov_b32 v7, 0")
    a("buffer_store_dwordx4 v[4:7], v1, s[20:23], 0 offen")
    a("v_lshrrev_b32 v1, 3, v0")
    a("s_lshl_b32 s24, s3, 5")
    a("v_add_u32 v1, s24, v1")
    a("v_mul_u32_u24 v1, 1152, v1")
    a("v_and_b32 v2, 7, v0")
    a("v_lshl_add_u32 v1, v2, 4, v1")
    for i in range(9):
        a(f"buffer_load_dwordx4 v[{12+4*i}:{15+4*i}], v1, s[12:15], 0 offen offset:{128*i}")
    a("s_waitcnt vmcnt(0)")
    for i in range(36):
        a(f"v_lshlrev_b32 v{48+2*i}, 16, v{12+i}")
        a(f"v_and_b32 v{49+2*i}, 0xffff0000, v{12+i}")
    a("v_mov_b32 v3, 0")
    a("v_mov_b32 v4, 0")
    for i in range(0, 72, 2):
        a(f"v_add_f32 v3, v3, v{48+i}")
        a(f"v_add_f32 v4, v4, v{49+i}")
    a("v_add_f32 v3, v3, v4")

    def red8(v):
        for m in (1, 2, 4):
            a(f"ds_swizzle_b32 v5, v{v} offset:{(m<<10)|0x1f}")
            a("s_waitcnt lgkmcnt(0)")
            a(f"v_add_f32 v{v}, v{v}, v5")
    red8(3)
    a(f"s_mov_b32 s25, 0x3ae38e39")
    a("v_mul_f32 v3, s25, v3")
    a("v_mov_b32 v4, 0")
    a("v_mov_b32 v6, 0")
    for i in range(0, 72, 2):
        a(f"v_sub_f32 v7, v{48+i}, v3")
        a(f"v_sub_f32 v8, v{49+i}, v3")
        a("v_fmac_f32 v4, v7, v7")
        a("v_fmac_f32 v6, v8, v8")
    a("v_add_f32 v4, v4, v6")
    red8(4)
    a("v_mul_f32 v4, s25, v4")
    bf16r(a, 3)
    bf16r(a, 4)
    a("v_add_f32 v4, 0x3727c5ac, v4")
    bf16r(a, 4)
    a("v_sqrt_f32 v4, v4")
    a("s_nop 0")
    bf16r(a, 4)
    a("v_rcp_f32 v4, v4")
    a("s_nop 0")
    for i in range(36):
        a(f"v_sub_f32 v7, v{48+2*i}, v3")
        a(f"v_sub_f32 v8, v{49+2*i}, v3")
        a("v_cvt_pk_bf16_f32 v7, v7, v8")
        a("v_and_b32 v8, 0xffff0000, v7")
        a("v_lshlrev_b32 v7, 16, v7")
        a("v_mul_f32 v7, v7, v4")
        a("v_mul_f32 v8, v8, v4")
        a(f"v_cvt_pk_bf16_f32 v{12+i}, v7, v8")
    a("v_lshrrev_b32 v1, 3, v0")
    a("v_add_u32 v1, s24, v1")
    a("v_lshrrev_b32 v2, 4, v1")
    a("v_mul_u32_u24 v2, 18432, v2")
    a("v_and_b32 v1, 15, v1")
    a("v_lshl_add_u32 v2, v1, 4, v2")
    a("v_and_b32 v1, 7, v0")
    a("v_lshl_add_u32 v2, v1, 8, v2")
    for i in range(9):
        a(f"s_mov_b32 s26, {2048*i}")
        a(f"buffer_store_dwordx4 v[{12+4*i}:{15+4*i}], v2, s[16:19], s26 offen")
    a("s_endpgm")
    a.label("K0_COPY")
    a(f"s_load_dwordx2 s[4:5], s[0:1], {KA['ws']}")
    a(f"s_load_dwordx2 s[6:7], s[0:1], {KA['wqkv']}")
    a(f"s_load_dwordx2 s[8:9], s[0:1], {KA['wg']}")
    a(f"s_load_dwordx2 s[10:11], s[0:1], {KA['wu']}")
    a(f"s_load_dwordx2 s[12:13], s[0:1], {KA['wd']}")
    a(f"s_sub_u32 s3, s2, {NMOD+NLN}")
    a("s_waitcnt lgkmcnt(0)")

    def copy(src_addr):
        for j in range(8):
            a(f"v_add_u32 v3, {256*j}, v2")
            src_addr(3, 4)
            a(f"buffer_load_dwordx4 {vr(16+4*j,4)}, v4, s[16:19], 0 offen")
        a("v_lshlrev_b32 v2, 4, v2")
        a("s_waitcnt vmcnt(0)")
        for j in range(8):
            a(f"s_mov_b32 s26, {4096*j}")
            a(f"buffer_store_dwordx4 {vr(16+4*j,4)}, v2, s[20:23], s26 offen")
        a("s_endpgm")
    a.srd(16, 6, 576 * 3456)
    a.srd_ws(20, 4, WS_W1, W1_BYTES)
    a("s_lshl_b32 s24, s3, 11")
    a("v_add_u32 v2, s24, v0")
    a(f"s_mov_b32 s24, {magic(9216)}")
    a("v_mov_b32 v15, 32")
    for j in range(8):
        a(f"v_add_u32 v3, {256*j}, v2")
        a("v_mul_hi_u32 v5, v3, s24")
        a("v_mul_u32_u24 v6, 9216, v5")
        a("v_sub_u32 v6, v3, v6")
        a("v_lshrrev_b32 v7, 9, v6")
        a("v_bfe_u32 v8, v6, 6, 3")
        a("v_bfe_u32 v9, v6, 5, 1")
        a("v_and_b32 v10, 31, v6")
        a("v_lshrrev_b32 v11, 3, v10")
        a("v_bfe_u32 v12, v10, 1, 2")
        a("v_and_b32 v13, 1, v10")
        a("v_lshlrev_b32 v7, 5, v7")
        a("v_lshl_add_u32 v7, v11, 3, v7")
        a("v_lshl_add_u32 v7, v9, 2, v7")
        a("v_add_u32 v7, v7, v12")
        a("v_mul_u32_u24 v7, 3456, v7")
        a("v_mul_u32_u24 v5, 72, v5")
        a("v_add_u32 v7, v7, v5")
        a("v_mul_u32_u24 v11, 1152, v13")
        a("v_lshl_add_u32 v11, v8, 3, v11")
        a("v_lshlrev_b32 v12, 5, v8")
        a("v_lshl_add_u32 v12, v13, 4, v12")
        a("v_add_u32 v12, 2144, v12")
        a("v_cmp_gt_u32 vcc, 5, v8")
        a("v_mov_b32 v14, 8")
        a("s_nop 0")
        a("v_cndmask_b32 v11, v12, v11, vcc")
        a("v_cndmask_b32 v14, v14, 32, vcc") if False else a("v_cndmask_b32 v14, 8, v15, vcc")
        a("v_add_u32 v7, v7, v11")
        a("v_add_u32 v14, v7, v14")
        a(f"buffer_load_dwordx2 {vr(16+4*j,2)}, v7, s[16:19], 0 offen")
        a(f"buffer_load_dwordx2 {vr(18+4*j,2)}, v14, s[16:19], 0 offen")
    a("v_lshlrev_b32 v2, 4, v2")
    a("s_waitcnt vmcnt(0)")
    for j in range(8):
        a(f"s_mov_b32 s26, {4096*j}")
        a(f"buffer_store_dwordx4 {vr(16+4*j,4)}, v2, s[20:23], s26 offen")
    a("s_endpgm")
    a.label("K0_END")
    a("s_endpgm")
    return kernel_desc("k0_kernel", 128, 48), f"; @launch kernel=k0_kernel grid=({NK0},1,1) block=(256,1,1) lds=8192"


def gen_k5(a):
    kernel_header(a, "k5_kernel")
    NWG = S * D // 4 // 256
    a(f"s_cmp_ge_u32 s2, {NWG}")
    a("s_cbranch_scc1 K5_END")
    a(f"s_load_dwordx2 s[4:5], s[0:1], {KA['ws']}")
    a(f"s_load_dwordx2 s[6:7], s[0:1], {KA['out']}")
    a("s_waitcnt lgkmcnt(0)")
    a.srd_ws(8, 4, WS_PART, 4 * S * D * 4)
    a.srd_ws(12, 4, WS_X1, S * D * 2)
    a.srd_ws(16, 4, WS_MOD, 3456 * 4)
    a.srd(20, 6, S * D * 2)
    a("s_lshl_b32 s24, s2, 8")
    a("v_add_u32 v1, s24, v0")
    a("v_lshlrev_b32 v2, 4, v1")
    a("v_lshlrev_b32 v3, 3, v1")
    P = S * D * 4
    for k in range(4):
        a(f"s_mov_b32 s25, {k*P}")
        a(f"buffer_load_dwordx4 v[{8+4*k}:{11+4*k}], v2, s[8:11], s25 offen")
    a("buffer_load_dwordx2 v[24:25], v3, s[12:15], 0 offen")
    a(f"s_mov_b32 s26, {magic(144)}")
    a("v_mul_hi_u32 v4, v1, s26")
    a("v_mul_u32_u24 v4, 144, v4")
    a("v_sub_u32 v4, v1, v4")
    a("v_lshlrev_b32 v4, 4, v4")
    a(f"s_mov_b32 s25, {5*576*4}")
    a("buffer_load_dwordx4 v[28:31], v4, s[16:19], s25 offen")
    a("s_waitcnt vmcnt(0)")
    for j in range(4):
        a(f"v_add_f32 v{8+j}, v{8+j}, v{12+j}")
        a(f"v_add_f32 v{16+j}, v{16+j}, v{20+j}")
        a(f"v_add_f32 v{8+j}, v{8+j}, v{16+j}")
    a("v_cvt_pk_bf16_f32 v12, v8, v9")
    a("v_cvt_pk_bf16_f32 v13, v10, v11")
    a("v_lshlrev_b32 v8, 16, v12")
    a("v_and_b32 v9, 0xffff0000, v12")
    a("v_lshlrev_b32 v10, 16, v13")
    a("v_and_b32 v11, 0xffff0000, v13")
    for j in range(4):
        a(f"v_mul_f32 v{8+j}, v{8+j}, v{28+j}")
    a("v_cvt_pk_bf16_f32 v12, v8, v9")
    a("v_cvt_pk_bf16_f32 v13, v10, v11")
    a("v_lshlrev_b32 v8, 16, v12")
    a("v_and_b32 v9, 0xffff0000, v12")
    a("v_lshlrev_b32 v10, 16, v13")
    a("v_and_b32 v11, 0xffff0000, v13")
    a("v_lshlrev_b32 v16, 16, v24")
    a("v_and_b32 v17, 0xffff0000, v24")
    a("v_lshlrev_b32 v18, 16, v25")
    a("v_and_b32 v19, 0xffff0000, v25")
    for j in range(4):
        a(f"v_add_f32 v{8+j}, v{8+j}, v{16+j}")
    a("v_cvt_pk_bf16_f32 v12, v8, v9")
    a("v_cvt_pk_bf16_f32 v13, v10, v11")
    a("buffer_store_dwordx2 v[12:13], v3, s[20:23], 0 offen")
    a.label("K5_END")
    a("s_endpgm")
    return kernel_desc("k5_kernel", 32, 32), f"; @launch kernel=k5_kernel grid=({NWG},1,1) block=(256,1,1) lds=0"


def gen_copy34(a):
    a(f"s_load_dwordx2 s[4:5], s[0:1], {KA['ws']}")
    a(f"s_load_dwordx2 s[8:9], s[0:1], {KA['wg']}")
    a(f"s_load_dwordx2 s[10:11], s[0:1], {KA['wu']}")
    a(f"s_load_dwordx2 s[12:13], s[0:1], {KA['wd']}")
    a("s_waitcnt lgkmcnt(0)")
    def copy(src_addr):
        for j in range(8):
            a(f"v_add_u32 v3, {256*j}, v2")
            src_addr(3, 4)
            a(f"buffer_load_dwordx4 {vr(16+4*j,4)}, v4, s[16:19], 0 offen")
        a("v_lshlrev_b32 v2, 4, v2")
        a("s_waitcnt vmcnt(0)")
        for j in range(8):
            a(f"s_mov_b32 s26, {4096*j}")
            a(f"buffer_store_dwordx4 {vr(16+4*j,4)}, v2, s[20:23], s26 offen")
        a("s_endpgm")
    a(f"s_cmp_ge_u32 s3, {2*NC3}")
    a("s_cbranch_scc1 K0_C4")
    a(f"s_cmp_ge_u32 s3, {NC3}")
    a("s_cselect_b32 s8, s10, s8")
    a("s_cselect_b32 s9, s11, s9")
    a(f"s_cselect_b32 s27, {NC3}, 0")
    a.srd(16, 8, 576 * 9216)
    a.srd_ws(20, 4, WS_W3, W3_BYTES)
    a("s_lshl_b32 s24, s3, 11")
    a("v_add_u32 v2, s24, v0")
    a("s_lshl_b32 s27, s27, 11")
    a(f"s_mov_b32 s24, {magic(3456)}")
    a(f"s_mov_b32 s25, {magic(6)}")

    def a3(i, o):
        a(f"v_subrev_u32 v{o}, s27, v{i}")
        a(f"v_mul_hi_u32 v5, v{o}, s24")
        a("v_mul_u32_u24 v6, 3456, v5")
        a(f"v_sub_u32 v6, v{o}, v6")
        a("v_mul_hi_u32 v7, v6, s25")
        a("v_mul_u32_u24 v8, 6, v7")
        a("v_sub_u32 v8, v6, v8")
        a("v_mul_u32_u24 v7, 9216, v7")
        a("v_mul_u32_u24 v5, 96, v5")
        a("v_lshl_add_u32 v7, v8, 4, v7")
        a(f"v_add_u32 v{o}, v7, v5")
    copy(a3)
    a.label("K0_C4")
    a(f"s_sub_u32 s3, s3, {2*NC3}")
    a.srd(16, 12, DF * 1152)
    a.srd_ws(20, 4, WS_W4, W4_BYTES)
    a("s_lshl_b32 s24, s3, 11")
    a("v_add_u32 v2, s24, v0")
    a(f"s_mov_b32 s24, {magic(5184)}")
    a(f"s_mov_b32 s25, {magic(18)}")
    a("s_mov_b32 s27, 82944")

    def a4(i, o):
        a(f"v_lshrrev_b32 v5, 4, v{i}")
        a("v_mul_hi_u32 v5, v5, s24")
        a("v_mul_lo_u32 v6, v5, s27")
        a(f"v_sub_u32 v6, v{i}, v6")
        a("v_mul_hi_u32 v7, v6, s25")
        a("v_mul_u32_u24 v8, 18, v7")
        a("v_sub_u32 v8, v6, v8")
        a("v_add_u32 v9, 10, v8")
        a("v_subrev_u32 v10, 18, v9")
        a("v_cmp_gt_u32 vcc, 18, v9")
        a("s_nop 1")
        a("v_cndmask_b32 v9, v10, v9, vcc")
        a("v_and_b32 v10, 8, v7")
        a("v_cmp_eq_u32 vcc, 0, v10")
        a("s_nop 1")
        a("v_cndmask_b32 v8, v9, v8, vcc")
        a("v_mul_u32_u24 v7, 1152, v7")
        a("v_mul_u32_u24 v5, 288, v5")
        a("v_lshl_add_u32 v7, v8, 4, v7")
        a(f"v_add_u32 v{o}, v7, v5")
    copy(a4)
```

```python
from common import *
LOG2E = 0x3fb8aa3b

L_WT = 0
L_MOD = 2048
L_W = 6656
L_PK = L_W
L_VV = L_W + 128 * 200
K1_LDS = L_W + 147456


def gen_k1(a):
    kernel_header(a, "k1_kernel")
    vm = Score(a, "vmcnt")
    lg = Score(a, "lgkmcnt")
    XF = lambda p, ks: 100 + (p * 18 + ks) * 4
    ACC = lambda T, p: 24 + (T * 2 + p) * 4
    a("s_cmp_ge_u32 s2, 256")
    a("s_cbranch_scc1 K1_END")
    st = Stamper(a, "k1")
    st()
    a(f"s_load_dwordx2 s[4:5], s[0:1], {KA['ws']}")
    a(f"s_load_dwordx2 s[6:7], s[0:1], {KA['wqkv']}")
    a(f"s_load_dwordx2 s[8:9], s[0:1], {KA['wphi']}")
    a("v_lshrrev_b32 v2, 6, v0")
    a("v_and_b32 v1, 63, v0")
    a("s_nop 0")
    a("v_readfirstlane_b32 s3, v2")
    a("s_and_b32 s40, s2, 15")
    a("s_lshr_b32 s41, s2, 4")
    a("s_waitcnt lgkmcnt(0)")
    a.srd_ws(12, 4, WS_W1, W1_BYTES)
    a.srd_ws(16, 4, WS_XN, S * D * 2)
    a.srd_ws(20, 4, WS_MOD, 3456 * 4)
    a.srd(24, 8, 32 * 324 * 2)
    a.srd_ws(28, 4, WS_PHIQ, PHIQ_BYTES)
    a.srd_ws(32, 4, WS_KV, KV_BYTES)
    a("v_mov_b32 v255, 0x80000000")
    a("v_and_b32 v3, 15, v1")
    a("v_lshrrev_b32 v4, 4, v1")
    a("v_lshlrev_b32 v5, 4, v0")
    a("buffer_load_dwordx4 v[24:27], v5, s[20:23], 0 offen"); vm.issue("mod")
    a("v_add_u32 v6, 4096, v5")
    a("v_cmp_gt_u32 vcc, 32, v0")
    a("s_nop 1")
    a("v_cndmask_b32 v6, v255, v6, vcc")
    a("buffer_load_dwordx4 v[28:31], v6, s[20:23], 0 offen"); vm.issue("mod")
    a("s_lshl_b32 s42, s40, 7")
    a("s_lshl_b32 s43, s3, 5")
    a("s_add_u32 s42, s42, s43")
    a("s_lshr_b32 s43, s42, 4")
    a("s_mul_i32 s43, s43, 18432")
    a("v_lshlrev_b32 v6, 4, v1")
    a("v_add_u32 v6, s43, v6")

    def xnload(c):
        for p in range(2):
            for k in range(6):
                ks = 6 * c + k
                if k % 3 == 0:
                    a(f"s_mov_b32 s43, {p*18432 + ks*1024}")
                a(f"buffer_load_dwordx4 {vr(XF(p,ks),4)}, v6, s[16:19], s43 offen offset:{1024*(k%3)}"); vm.issue(("xn", c))
    a("s_mul_i32 s46, s41, 147456")
    a("s_mul_i32 s50, s3, 12288")
    a("s_add_u32 s46, s46, s50")
    a("v_lshlrev_b32 v76, 4, v1")
    a("v_add_u32 v76, s46, v76")
    a(f"s_add_u32 s51, s50, {L_W}")

    def wdma(c):
        for j in range(12):
            a(f"s_mov_b32 s50, {c*49152 + 1024*j}")
            a(f"s_add_u32 m0, s51, {c*49152 + 1024*j}")
            a("s_nop 0")
            a(f"buffer_load_dwordx4 v76, s[12:15], s50 offen lds"); vm.issue(("dma", c))
    xnload(0)
    wdma(0)
    a(f"s_mov_b32 s44, {magic(480)}")
    a(f"s_mov_b32 s45, {magic(24)}")
    a("s_mul_i32 s46, s41, 648*2")
    for j in range(4):
        a(f"v_add_u32 v8, {256*j}, v0")
        a("v_mul_hi_u32 v9, v8, s44")
        a("v_mul_u32_u24 v10, 480, v9")
        a("v_sub_u32 v10, v8, v10")
        a("v_mul_hi_u32 v11, v10, s45")
        a("v_mul_u32_u24 v12, 24, v11")
        a("v_sub_u32 v12, v10, v12")
        a("v_lshlrev_b32 v13, 1, v9")
        a("v_sub_u32 v12, v12, v13")
        a("v_mul_u32_u24 v13, 324, v9")
        a("v_mul_u32_u24 v14, 18, v12")
        a("v_add3_u32 v13, v13, v14, v11")
        a("v_lshl_add_u32 v13, v13, 1, s46")
        a("v_cmp_gt_u32 vcc, 18, v12")
        a("v_cmp_gt_u32 s[48:49], 18, v11")
        a("s_nop 1")
        a("v_cndmask_b32 v13, v255, v13, vcc")
        a("v_cndmask_b32 v13, v255, v13, s[48:49]")
        if j == 3:
            a("v_cmp_gt_u32 vcc, 960, v8")
            a("s_nop 1")
            a("v_cndmask_b32 v13, v255, v13, vcc")
        a(f"buffer_load_ushort v{92+j}, v13, s[24:27], 0 offen"); vm.issue("wt")
    xnload(1)
    wdma(1)
    vm.wait("mod")
    a(f"ds_write_b128 v5, v[24:27] offset:{L_MOD}")
    a("v_cmp_gt_u32 vcc, 32, v0")
    a("s_and_saveexec_b64 s[48:49], vcc")
    a(f"ds_write_b128 v5, v[28:31] offset:{L_MOD+4096}")
    a("s_mov_b64 exec, s[48:49]")
    a("s_waitcnt lgkmcnt(0)")
    a("s_barrier")
    st()
    a("v_lshlrev_b32 v88, 3, v1")
    a(f"v_add_u32 v88, {L_W}, v88")
    a("v_lshlrev_b32 v90, 5, v4")
    MR = [244, 248, 92, 96]

    def mod_ops(c):
        L = []
        for k in range(6):
            ks = 6 * c + k
            L.append(("r", f"ds_read_b128 {vr(MR[0],4)}, v90 offset:{L_MOD+128*ks}"))
            L.append(("r", f"ds_read_b128 {vr(MR[1],4)}, v90 offset:{L_MOD+128*ks+16}"))
            L.append(("r", f"ds_read_b128 {vr(MR[2],4)}, v90 offset:{L_MOD+2304+128*ks}"))
            L.append(("r", f"ds_read_b128 {vr(MR[3],4)}, v90 offset:{L_MOD+2304+128*ks+16}"))
            L.append(("w",))
            for p in range(2):
                for j in range(4):
                    x = XF(p, ks) + j
                    sa_ = MR[j // 2] + 2 * (j % 2)
                    ca_ = MR[2 + j // 2] + 2 * (j % 2)
                    L.append(f"v_lshlrev_b32 v252, 16, v{x}")
                    L.append(f"v_and_b32 v253, 0xffff0000, v{x}")
                    L.append(f"v_fma_f32 v252, v252, v{ca_}, v{sa_}")
                    L.append(f"v_fma_f32 v253, v253, v{ca_+1}, v{sa_+1}")
                    L.append(f"v_cvt_pk_bf16_f32 v{x}, v252, v253")
        return L

    def emit_mod(x):
        if isinstance(x, tuple):
            if x[0] == "r":
                a(x[1]); lg.issue("m")
            else:
                lg.wait("m")
        else:
            a(x)
    vm.wait("wt")
    a("v_lshlrev_b32 v8, 1, v0")
    for j in range(4):
        a(f"ds_write_b16 v8, v{92+j} offset:{L_WT+512*j}")
    a("s_waitcnt lgkmcnt(0)")
    lg.q = []
    vm.wait(("xn", 0))
    for x in mod_ops(0):
        emit_mod(x)
    for c in range(3):
        vm.wait(("dma", c))
        a("s_barrier")
        st(lg)
        if c == 0:
            xnload(2)
            wdma(2)
        seq = [(ks, T) for ks in range(6 * c, 6 * c + 6) for T in range(8)]
        pend = []
        if c < 2:
            vm.wait(("xn", c + 1))
            pend = mod_ops(c + 1)
        per = -(-len(pend) // (len(seq) - 4)) if pend else 0

        def rd(n):
            ks, T = seq[n]
            b = 8 + 4 * (n & 3)
            off = ((ks - 6 * c) * 8 + T) * 1024
            a(f"ds_read_b64_tr_b16 {vr(b,2)}, v88 offset:{off}"); lg.issue(("a", n))
            a(f"ds_read_b64_tr_b16 {vr(b+2,2)}, v88 offset:{off+512}"); lg.issue(("a", n))
        for n in range(3):
            rd(n)
        for n in range(len(seq)):
            ks, T = seq[n]
            if n + 3 < len(seq):
                rd(n + 3)
            lg.wait(("a", n))
            b = 8 + 4 * (n & 3)
            for p in range(2):
                cc = "0" if ks == 0 else vr(ACC(T, p), 4)
                a(f"v_mfma_f32_16x16x32_bf16 {vr(ACC(T,p),4)}, {vr(b,4)}, {vr(XF(p,ks),4)}, {cc}")
            for x in pend[:per]:
                emit_mod(x)
            pend = pend[per:]
        assert not pend
        if c < 2:
            a("v_add_u32 v88, 49152, v88")
    a.nop(10)
    a("s_barrier")
    st(lg)
    a("s_lshl_b32 s43, s3, 5")
    a("v_add_u32 v8, s43, v3")
    a("v_mul_u32_u24 v9, 104, v8")
    a("v_lshl_add_u32 v9, v4, 3, v9")
    for p in range(2):
        for tv in range(3):
            c = ACC(5 + tv, p)
            a(f"v_cvt_pk_bf16_f32 v10, v{c}, v{c+1}")
            a(f"v_cvt_pk_bf16_f32 v11, v{c+2}, v{c+3}")
            a(f"ds_write_b64 v9, v[10:11] offset:{L_VV + p*16*104 + 32*tv}")
    APH = lambda t, u: 100 + (t * 3 + u) * 4
    a("v_lshrrev_b32 v9, 2, v3")
    a("v_and_b32 v10, 3, v1")
    a("v_and_b32 v11, 1, v9")
    a("v_mul_u32_u24 v11, 960, v11")
    a("v_mul_u32_u24 v12, 48, v10")
    a("v_add_u32 v11, v11, v12")
    a("v_cmp_eq_u32 s[48:49], v9, v4")
    for t in range(5):
        for u in range(3):
            a(f"ds_read_b128 {vr(APH(t,u),4)}, v11 offset:{L_WT + t*192 + 16*u}")
    a("s_waitcnt lgkmcnt(0)")
    for i in range(60):
        a(f"v_cndmask_b32 v{100+i}, 0, v{100+i}, s[48:49]")
    BQ = lambda u: 160 + 4 * u
    P = 172
    EP, EM, OUT = 192, 210, 228
    a(f"s_mov_b32 s44, {LOG2E}")
    a("v_mov_b32 v170, 0")
    a("v_mov_b32 v171, 0")
    a("s_lshr_b32 s45, s42, 4")
    a("s_lshl_b32 s45, s45, 3")
    a("s_lshr_b32 s46, s41, 1")
    a("s_add_u32 s45, s45, s46")
    a("s_mul_i32 s45, s45, 5120")
    a("s_and_b32 s46, s41, 1")
    a("s_lshl_b32 s46, s46, 9")
    a("s_add_u32 s45, s45, s46")
    a("v_lshlrev_b32 v90, 4, v1")
    a("v_add_u32 v90, s45, v90")
    a("v_mov_b32 v246, 0")
    a("v_mov_b32 v247, 0")
    a("v_mul_u32_u24 v91, 200, v8")
    a("v_and_b32 v92, 1, v4")
    a("v_mul_u32_u24 v92, 96, v92")
    a("v_add_u32 v91, v91, v92")
    for p in range(2):
        for u in range(3):
            for h in range(2):
                T = 2 * u + h
                if T < 5:
                    c = ACC(T, p)
                    a(f"v_cvt_pk_bf16_f32 v{BQ(u)+2*h}, v{c}, v{c+1}")
                    a(f"v_cvt_pk_bf16_f32 v{BQ(u)+2*h+1}, v{c+2}, v{c+3}")
        a.nop(2)
        for t in range(5):
            for u in range(3):
                c = "0" if u == 0 else vr(P + 4 * t, 4)
                a(f"v_mfma_f32_16x16x32_bf16 {vr(P+4*t,4)}, {vr(APH(t,u),4)}, {vr(BQ(u),4)}, {c}")
        a.nop(10)
        for j in range(0, 18, 2):
            a(f"v_cvt_pk_bf16_f32 v93, v{P+j}, v{P+j+1}")
            a(f"v_lshlrev_b32 v{P+j}, 16, v93")
            a(f"v_and_b32 v{P+j+1}, 0xffff0000, v93")
        a(f"v_max3_f32 v93, v{P}, v{P+1}, v{P+2}")
        a(f"v_min3_f32 v94, v{P}, v{P+1}, v{P+2}")
        for j in range(3, 17, 2):
            a(f"v_max3_f32 v93, v93, v{P+j}, v{P+j+1}")
            a(f"v_min3_f32 v94, v94, v{P+j}, v{P+j+1}")
        a(f"v_max_f32 v93, v93, v{P+17}")
        a(f"v_min_f32 v94, v94, v{P+17}")
        a("v_mul_f32 v93, s44, v93")
        a("v_mul_f32 v94, s44, v94")
        for j in range(18):
            a(f"v_fma_f32 v{EP+j}, v{P+j}, s44, -v93")
            a(f"v_fma_f32 v{EM+j}, -v{P+j}, s44, v94")
        for j in range(18):
            a(f"v_exp_f32 v{EP+j}, v{EP+j}")
            a(f"v_exp_f32 v{EM+j}, v{EM+j}")
        a("s_nop 0")
        a(f"v_add_f32 v93, v{EP}, v{EP+1}")
        a(f"v_add_f32 v94, v{EM}, v{EM+1}")
        for j in range(2, 18):
            a(f"v_add_f32 v93, v93, v{EP+j}")
            a(f"v_add_f32 v94, v94, v{EM+j}")
        a("v_rcp_f32 v93, v93")
        a("v_rcp_f32 v94, v94")
        a("s_nop 0")
        for j in range(18):
            a(f"v_mul_f32 v{EP+j}, v{EP+j}, v93")
            a(f"v_mul_f32 v{EM+j}, v{EM+j}, v94")
        for j in range(9):
            a(f"v_cvt_pk_bf16_f32 v{OUT+j}, v{EP+2*j}, v{EP+2*j+1}")
            a(f"v_cvt_pk_bf16_f32 v{OUT+9+j}, v{EM+2*j}, v{EM+2*j+1}")
        a("s_mov_b64 exec, 0xffffffff")
        a(f"v_add_u32 v95, {p*40960}, v90")
        for i in range(4):
            a(f"buffer_store_dwordx4 {vr(OUT+4*i,4)}, v95, s[28:31], 0 offen offset:{1024*i}")
        a(f"s_mov_b32 s46, 4096")
        a(f"buffer_store_dwordx4 {vr(OUT+16,4)}, v95, s[28:31], s46 offen")
        a("s_mov_b32 exec_lo, 0")
        a("s_mov_b32 exec_hi, -1")
        for i in range(9):
            a(f"ds_write_b64 v91, {vr(OUT+2*i,2)} offset:{L_PK + p*16*200 + 8*i}")
        a("s_mov_b64 exec, -1")
        a.nop(2)
    a("s_waitcnt lgkmcnt(0)")
    a("s_barrier")
    st()
    a("s_and_b32 s45, s3, 1")
    a("s_lshr_b32 s46, s3, 1")
    a("v_lshrrev_b32 v9, 2, v3")
    a("v_and_b32 v10, 3, v1")
    a("v_lshl_add_u32 v9, v4, 3, v9")
    a("v_mul_u32_u24 v11, 200, v9")
    a("v_lshl_add_u32 v11, v10, 3, v11")
    a("s_mul_i32 s47, s45, 96")
    a(f"s_add_u32 s47, s47, {L_PK}")
    a("v_add_u32 v11, s47, v11")
    a("v_mul_u32_u24 v12, 104, v9")
    a("v_lshl_add_u32 v12, v10, 3, v12")
    a("s_lshl_b32 s47, s45, 5")
    a("s_lshl_b32 s50, s46, 5")
    a("s_add_u32 s47, s47, s50")
    a(f"s_add_u32 s47, s47, {L_VV}")
    a("v_add_u32 v12, s47, v12")
    a("v_mov_b32 v96, 0x3f803f80")
    a("v_mov_b32 v97, 0x3f803f80")
    a("v_mov_b32 v98, 0x3f803f80")
    a("v_mov_b32 v99, 0x3f803f80")
    for kk in range(4):
        a(f"ds_read_b64_tr_b16 {vr(100+4*kk,2)}, v12 offset:{kk*32*104}")
        a(f"ds_read_b64_tr_b16 {vr(102+4*kk,2)}, v12 offset:{kk*32*104+4*104}")
        for b in range(3):
            r = 116 + (b * 4 + kk) * 4
            a(f"ds_read_b64_tr_b16 {vr(r,2)}, v11 offset:{kk*32*200+32*b}")
            a(f"ds_read_b64_tr_b16 {vr(r+2,2)}, v11 offset:{kk*32*200+32*b+4*200}")
    a("s_waitcnt lgkmcnt(0)")
    KV = 24
    ZZ = 40
    for b in range(3):
        for kk in range(4):
            c = "0" if kk == 0 else vr(KV + 4 * b, 4)
            a(f"v_mfma_f32_16x16x32_bf16 {vr(KV+4*b,4)}, {vr(100+4*kk,4)}, {vr(116+(b*4+kk)*4,4)}, {c}")
    a("s_cmp_eq_u32 s46, 0")
    a("s_cbranch_scc0 K1_NOZ")
    for b in range(3):
        for kk in range(4):
            c = "0" if kk == 0 else vr(ZZ + 4 * b, 4)
            a(f"v_mfma_f32_16x16x32_bf16 {vr(ZZ+4*b,4)}, v[96:99], {vr(116+(b*4+kk)*4,4)}, {c}")
    a.label("K1_NOZ")
    a("s_lshl_b32 s47, s41, 1")
    a("s_add_u32 s47, s47, s45")
    a("s_mul_i32 s47, s47, 3200")
    a("s_lshl_b32 s50, s46, 4")
    a("s_lshl_b32 s51, s45, 1")
    a("s_sub_u32 s50, s50, s51")
    a("v_lshl_add_u32 v9, v4, 2, s50")
    a("v_lshlrev_b32 v10, 2, v3")
    a("v_add_u32 v10, s47, v10")
    a("v_cmp_gt_u32 s[52:53], 4, v3")
    a.nop(8)
    for r in range(4):
        a(f"v_add_u32 v11, {r}, v9")
        a("v_cmp_gt_u32 s[54:55], 18, v11")
        a("v_mul_u32_u24 v12, 160, v11")
        a("v_add_u32 v12, v12, v10")
        a("s_nop 1")
        a("s_mov_b64 exec, s[54:55]")
        a(f"buffer_atomic_add_f32 v{KV+r}, v12, s[32:35], 0 offen")
        a(f"buffer_atomic_add_f32 v{KV+4+r}, v12, s[32:35], 0 offen offset:64")
        a("s_and_b64 exec, s[54:55], s[52:53]")
        a(f"buffer_atomic_add_f32 v{KV+8+r}, v12, s[32:35], 0 offen offset:128")
        a("s_mov_b64 exec, -1")
    a("s_cmp_eq_u32 s46, 0")
    a("s_cbranch_scc0 K1_END2")
    a("s_mov_b64 exec, 0xffff")
    a(f"buffer_atomic_add_f32 v{ZZ}, v10, s[32:35], 0 offen offset:{18*160}")
    a(f"buffer_atomic_add_f32 v{ZZ+4}, v10, s[32:35], 0 offen offset:{18*160+64}")
    a("s_mov_b64 exec, 0xf")
    a(f"buffer_atomic_add_f32 v{ZZ+8}, v10, s[32:35], 0 offen offset:{18*160+128}")
    a.label("K1_END2")
    st.dump(3, "K1_END")
    a.label("K1_END")
    a("s_endpgm")
    return kernel_desc("k1_kernel", 256, 64), f"; @launch kernel=k1_kernel grid=(256,1,1) block=(256,1,1) lds={K1_LDS}"
```

```python
from common import *

L_T = 0
L_O = 12800
O_STR = 336
SLOT = 32 * 1408
L_W = L_O + 32 * O_STR
K2_LDS = L_W + 3 * SLOT
NST = 5
FUSE2B = False


def bf16r(a, v):
    a(f"v_cvt_pk_bf16_f32 v{v}, v{v}, v{v}")
    a(f"v_and_b32 v{v}, 0xffff0000, v{v}")


def gen_k2(a):
    kernel_header(a, "k2_kernel")
    vm = Score(a, "vmcnt")
    lg = Score(a, "lgkmcnt")
    a("s_cmp_ge_u32 s2, 256")
    a("s_cbranch_scc1 K2_END")
    stm = Stamper(a, "k2")
    stm()
    a(f"s_load_dwordx2 s[4:5], s[0:1], {KA['ws']}")
    a(f"s_load_dwordx2 s[6:7], s[0:1], {KA['wo']}")
    a("v_lshrrev_b32 v2, 6, v0")
    a("v_and_b32 v1, 63, v0")
    a("s_nop 0")
    a("v_readfirstlane_b32 s3, v2")
    a("s_and_b32 s41, s2, 3")
    a("s_lshr_b32 s40, s2, 2")
    a("s_lshl_b32 s40, s40, 5")
    a("s_and_b32 s42, s3, 1")
    a("s_lshr_b32 s43, s3, 1")
    a("s_waitcnt lgkmcnt(0)")
    a.srd(12, 6, 576 * 1152)
    a.srd_ws(24, 4, WS_KV, KV_BYTES)
    a.srd_ws(28, 4, WS_PHIQ, PHIQ_BYTES)
    a.srd_ws(32, 4, WS_PART, 4 * S * D * 4)
    a("v_mov_b32 v255, 0x80000000")
    a("v_and_b32 v3, 15, v1")
    a("v_lshrrev_b32 v4, 4, v1")
    a("s_lshr_b32 s48, s40, 4")
    a("s_add_u32 s48, s48, s43")
    a("s_lshl_b32 s48, s48, 3")
    a("s_lshl_b32 s49, s41, 1")
    a("s_add_u32 s48, s48, s49")
    a("s_add_u32 s48, s48, s42")
    a("s_mul_i32 s48, s48, 5120")
    a("v_lshlrev_b32 v8, 4, v1")
    PH = lambda u: 100 + 4 * u
    for u in range(4):
        a(f"buffer_load_dwordx4 {vr(PH(u),4)}, v8, s[28:31], s48 offen offset:{1024*u}"); vm.issue("phi")
    a("s_add_u32 s48, s48, 4096")
    a(f"buffer_load_dwordx4 {vr(PH(4),4)}, v8, s[28:31], s48 offen"); vm.issue("phi")
    a("v_lshlrev_b32 v8, 4, v0")
    a("v_lshlrev_b32 v9, 3, v0")
    a("s_mul_i32 s49, s41, 25600")
    for j in range(7):
        a(f"s_add_u32 s48, s49, {4096*j}")
        if j == 6:
            a("v_cmp_gt_u32 vcc, 64, v0")
            a("s_nop 1")
            a("v_cndmask_b32 v10, v255, v8, vcc")
            a(f"buffer_load_dwordx4 {vr(24+4*j,4)}, v10, s[24:27], s48 offen"); vm.issue("kv")
        else:
            a(f"buffer_load_dwordx4 {vr(24+4*j,4)}, v8, s[24:27], s48 offen"); vm.issue("kv")
    a(f"s_mov_b32 s44, {magic(88)}")
    a("s_and_b32 s45, s3, 1")
    a("s_lshl_b32 s45, s45, 2")
    a("s_lshl_b32 s46, s3, 3")
    a("s_mul_i32 s47, s41, 144*1152")
    for j in range(11):
        a(f"v_add_u32 v10, {64*j}, v1")
        a("v_mul_hi_u32 v11, v10, s44")
        a("v_mul_u32_u24 v12, 88, v11")
        a("v_sub_u32 v10, v10, v12")
        a("v_and_b32 v12, 2, v11")
        a("v_add_u32 v12, s45, v12")
        a("v_sub_u32 v10, v10, v12")
        a("v_add_u32 v11, s46, v11")
        a("v_mul_u32_u24 v11, 1152, v11")
        a("v_lshl_add_u32 v11, v10, 4, v11")
        a(f"v_add_u32 v{230+j}, s47, v11")
        a("v_cmp_gt_u32 vcc, 72, v10")
        a("s_nop 1")
        a(f"v_cndmask_b32 v{230+j}, v255, v{230+j}, vcc")
    a("s_mul_i32 s47, s3, 11264")

    def dma(st):
        slot = L_W + (st % 3) * SLOT
        a(f"s_mov_b32 s48, {st*32*1152}")
        for j in range(11):
            a(f"s_add_u32 m0, s47, {slot + 1024*j}")
            a("s_nop 0")
            a(f"buffer_load_dwordx4 v{230+j}, s[12:15], s48 offen lds"); vm.issue(("dma", st))
    dma(0)
    vm.wait("kv")
    for j in range(7):
        b = 24 + 4 * j
        a(f"v_cvt_pk_bf16_f32 v{b}, v{b}, v{b+1}")
        a(f"v_cvt_pk_bf16_f32 v{b+1}, v{b+2}, v{b+3}")
        if j == 6:
            a("v_cmp_gt_u32 vcc, 64, v0")
            a("s_and_saveexec_b64 s[50:51], vcc")
        a(f"ds_write_b64 v9, {vr(b,2)} offset:{L_T+2048*j}")
    a("v_lshrrev_b32 v10, 1, v0")
    a(f"v_mul_u32_u24 v10, {O_STR}, v10")
    a("v_and_b32 v11, 1, v0")
    a("v_lshl_add_u32 v10, v11, 4, v10")
    a("v_mov_b32 v12, 0")
    a("v_mov_b32 v13, 0")
    a("v_mov_b32 v14, 0")
    a("v_mov_b32 v15, 0")
    a(f"ds_write_b128 v10, v[12:15] offset:{L_O+288}")
    a("s_mov_b64 exec, s[50:51]")
    dma(1)
    dma(2)
    a("s_waitcnt lgkmcnt(0)")
    a("s_barrier")
    stm()
    a("v_lshrrev_b32 v9, 2, v3")
    a("v_and_b32 v10, 3, v1")
    a("v_cmp_eq_u32 s[50:51], v9, v4")
    a("v_mul_u32_u24 v11, 1600, v9")
    a("v_mul_u32_u24 v12, 80, v10")
    a("s_mul_i32 s48, s42, 6400")
    a("v_add3_u32 v11, v11, v12, s48")
    a(f"v_mul_u32_u24 v12, {O_STR}, v3")
    a("v_mul_u32_u24 v13, 36, v4")
    a("s_mul_i32 s48, s42, 144")
    a(f"s_mul_i32 s49, s43, {16*O_STR}")
    a("s_add_u32 s48, s48, s49")
    a("v_add3_u32 v12, v12, v13, s48")
    a("s_mov_b32 s49, 0x358637bd")
    PACC = 180
    for t in range(5):
        for u in range(5):
            a(f"ds_read_b128 {vr(24+(t*5+u)*4,4)}, v11 offset:{L_T + t*320 + 16*u}") if t < 3 else a(f"ds_read_b128 {vr(120+((t-3)*5+u)*4,4)}, v11 offset:{L_T + t*320 + 16*u}")
    a("s_waitcnt lgkmcnt(0)")
    AFR = lambda t, u: (24 + (t * 5 + u) * 4) if t < 3 else (120 + ((t - 3) * 5 + u) * 4)
    for t in range(5):
        for u in range(5):
            for i in range(4):
                a(f"v_cndmask_b32 v{AFR(t,u)+i}, 0, v{AFR(t,u)+i}, s[50:51]")
    vm.wait("phi")
    a.nop(2)
    for t in range(5):
        for u in range(5):
            c = "0" if u == 0 else vr(PACC + 4 * t, 4)
            a(f"v_mfma_f32_16x16x32_bf16 {vr(PACC+4*t,4)}, {vr(AFR(t,u),4)}, {vr(PH(u),4)}, {c}")
    a.nop(10)
    den = PACC + 18
    bf16r(a, den)
    a(f"v_add_f32 v{den}, s49, v{den}")
    bf16r(a, den)
    a(f"v_rcp_f32 v{den}, v{den}")
    for j in range(0, 18, 2):
        a(f"v_cvt_pk_bf16_f32 v14, v{PACC+j}, v{PACC+j+1}")
        a(f"v_lshlrev_b32 v15, 16, v14")
        a(f"v_and_b32 v14, 0xffff0000, v14")
        a(f"v_mul_f32 v15, v15, v{den}")
        a(f"v_mul_f32 v14, v14, v{den}")
        a(f"v_cvt_pk_bf16_f32 v14, v15, v14")
        a(f"ds_write_b32 v12, v14 offset:{L_O + 2*j}")
    a("s_waitcnt lgkmcnt(0)")
    a("s_barrier")
    stm()
    OB = lambda p, ks: 120 + (p * 5 + ks) * 4
    a(f"v_mul_u32_u24 v8, {O_STR}, v3")
    a("v_lshl_add_u32 v8, v4, 4, v8")
    for p in range(2):
        for ks in range(5):
            a(f"ds_read_b128 {vr(OB(p,ks),4)}, v8 offset:{L_O+p*16*O_STR+64*ks}")
    a("v_lshrrev_b32 v9, 2, v3")
    a("v_and_b32 v10, 3, v1")
    a("v_lshl_add_u32 v11, v4, 3, v9")
    a("v_mul_u32_u24 v11, 1408, v11")
    a("v_lshrrev_b32 v12, 1, v9")
    a("v_lshl_add_u32 v11, v12, 5, v11")
    a("v_and_b32 v12, 1, v4")
    a("v_lshl_add_u32 v11, v12, 6, v11")
    a("v_lshl_add_u32 v11, v10, 3, v11")
    a("s_mul_i32 s48, s3, 288")
    a("v_add_u32 v11, s48, v11")
    for i in range(3):
        a(f"v_add_u32 v{224+i}, {L_W+i*SLOT}, v11")
    a("s_waitcnt lgkmcnt(0)")
    ACC = lambda T, p: 24 + (T * 2 + p) * 4
    FR = lambda i: 8 + 4 * (i & 3)
    cnt = 0
    lg.q = []
    for st in range(NST):
        vm.wait(("dma", st))
        a("s_barrier")
        stm(lg)
        if 1 <= st and st + 2 < NST:
            dma(st + 2)
        ad = f"v{224 + st % 3}"

        def rd(T):
            b = FR(cnt + T)
            a(f"ds_read_b64_tr_b16 {vr(b,2)}, {ad} offset:{32*T}"); lg.issue(("a", st, T))
            a(f"ds_read_b64_tr_b16 {vr(b+2,2)}, {ad} offset:{32*T+4*1408}"); lg.issue(("a", st, T))
        for T in range(3):
            rd(T)
        for T in range(9):
            if T + 3 < 9:
                rd(T + 3)
            lg.wait(("a", st, T))
            for p in range(2):
                c = "0" if st == 0 else vr(ACC(T, p), 4)
                a(f"v_mfma_f32_16x16x32_bf16 {vr(ACC(T,p),4)}, {vr(FR(cnt+T),4)}, {vr(OB(p,st),4)}, {c}")
        cnt += 9
    a("v_add_u32 v5, s40, v3")
    a("v_mul_u32_u24 v5, 2304, v5")
    a("v_lshl_add_u32 v5, v4, 4, v5")
    a("s_mul_i32 s49, s3, 576")
    a("v_add_u32 v5, s49, v5")
    a(f"v_add_u32 v6, {16*2304}, v5")
    a(f"s_mul_i32 s48, s41, {S*D*4}")
    a.nop(4)
    for T in range(9):
        for p in range(2):
            a(f"buffer_store_dwordx4 {vr(ACC(T,p),4)}, v{5+p}, s[32:35], s48 offen offset:{64*T}" + (" sc1" if FUSE2B else ""))
    if FUSE2B:
        a(f"s_load_dwordx2 s[8:9], s[0:1], {KA['dbg']}")
        a(f"s_load_dwordx2 s[10:11], s[0:1], {KA['x']}")
        a("s_waitcnt vmcnt(0) lgkmcnt(0)")
        a("s_barrier")
        a.srd(36, 8, 256)
        a.srd(16, 10, S * D * 2)
        a.srd_ws(20, 4, WS_MOD, 3456 * 4)
        a.srd_ws(24, 4, WS_X1, S * D * 2)
        a.srd_ws(28, 4, WS_H2, S * D * 2)
        a("s_cmp_eq_u32 s3, 0")
        a("s_cbranch_scc0 K2_NOAT")
        a("s_mov_b64 exec, 1")
        a("v_mov_b32 v8, 1")
        a("s_lshr_b32 s48, s2, 2")
        a("s_lshl_b32 s48, s48, 2")
        a("v_mov_b32 v9, s48")
        a("buffer_atomic_add v8, v9, s[36:39], 0 offen sc0")
        a("v_mov_b32 v9, 0")
        a("s_waitcnt vmcnt(0)")
        a("ds_write_b32 v9, v8")
        a("s_waitcnt lgkmcnt(0)")
        a("s_mov_b64 exec, -1")
        a.label("K2_NOAT")
        a("s_barrier")
        a("v_mov_b32 v9, 0")
        a("ds_read_b32 v8, v9")
        a("s_waitcnt lgkmcnt(0)")
        a("s_nop 0")
        a("v_readfirstlane_b32 s48, v8")
        a("s_nop 3")
        a("s_cmp_eq_u32 s48, 3")
        a("s_cbranch_scc0 K2_END2")
        PB = [24, 96, 168, 96]
        for k in range(3):
            a(f"s_mov_b32 s48, {k*S*D*4}")
            for T in range(9):
                for p in range(2):
                    a(f"buffer_load_dwordx4 {vr(PB[k]+(T*2+p)*4,4)}, v{5+p}, s[32:35], s48 offen offset:{64*T} sc1")
        a("s_waitcnt vmcnt(18)")
        for i in range(72):
            a(f"v_add_f32 v{24+i}, v{24+i}, v{96+i}")
        a(f"s_mov_b32 s48, {3*S*D*4}")
        for T in range(9):
            for p in range(2):
                a(f"buffer_load_dwordx4 {vr(96+(T*2+p)*4,4)}, v{5+p}, s[32:35], s48 offen offset:{64*T} sc1")
        a("s_waitcnt vmcnt(0)")
        for i in range(72):
            a(f"v_add_f32 v{168+i}, v{168+i}, v{96+i}")
        for i in range(72):
            a(f"v_add_f32 v{24+i}, v{24+i}, v{168+i}")
        a("v_lshrrev_b32 v7, 1, v5")
        a(f"v_add_u32 v10, {16*1152}, v7")
        XR = lambda T, p: 96 + (T * 2 + p) * 2
        for T in range(9):
            for p in range(2):
                a(f"buffer_load_dwordx2 {vr(XR(T,p),2)}, v{7 if p==0 else 10}, s[16:19], 0 offen offset:{32*T}")
        a("s_mul_i32 s48, s3, 576")
        a("v_lshlrev_b32 v11, 4, v4")
        a("v_add_u32 v11, s48, v11")
        for sec, base in ((2, 132), (3, 168), (4, 204)):
            a(f"s_mov_b32 s48, {sec*2304}")
            for T in range(9):
                a(f"buffer_load_dwordx4 {vr(base+4*T,4)}, v11, s[20:23], s48 offen offset:{64*T}")
        a("s_waitcnt vmcnt(0)")
        for T in range(9):
            for p in range(2):
                c = ACC(T, p)
                for h in range(2):
                    xr = XR(T, p) + h
                    a(f"v_cvt_pk_bf16_f32 v8, v{c+2*h}, v{c+2*h+1}")
                    a("v_lshlrev_b32 v9, 16, v8")
                    a("v_and_b32 v8, 0xffff0000, v8")
                    a(f"v_mul_f32 v9, v9, v{132+4*T+2*h}")
                    a(f"v_mul_f32 v8, v8, v{132+4*T+2*h+1}")
                    a("v_cvt_pk_bf16_f32 v8, v9, v8")
                    a("v_lshlrev_b32 v9, 16, v8")
                    a("v_and_b32 v8, 0xffff0000, v8")
                    a(f"v_lshlrev_b32 v12, 16, v{xr}")
                    a(f"v_and_b32 v13, 0xffff0000, v{xr}")
                    a("v_add_f32 v9, v9, v12")
                    a("v_add_f32 v8, v8, v13")
                    a(f"v_cvt_pk_bf16_f32 v{xr}, v9, v8")
                    a(f"v_lshlrev_b32 v{c+2*h}, 16, v{xr}")
                    a(f"v_and_b32 v{c+2*h+1}, 0xffff0000, v{xr}")
        for T in range(9):
            for p in range(2):
                a(f"buffer_store_dwordx2 {vr(XR(T,p),2)}, v{7 if p==0 else 10}, s[24:27], 0 offen offset:{32*T}")
        a("v_xor_b32 v13, 16, v1")
        a("v_lshlrev_b32 v13, 2, v13")
        a("v_xor_b32 v14, 32, v1")
        a("v_lshlrev_b32 v14, 2, v14")
        a("s_lshl_b32 s48, s3, 7")
        a("v_lshlrev_b32 v15, 2, v3")
        a("v_add_u32 v16, s48, v15")

        def rowred(off):
            for q in (240, 241):
                a(f"ds_bpermute_b32 v17, v13, v{q}")
                a("s_waitcnt lgkmcnt(0)")
                a(f"v_add_f32 v{q}, v{q}, v17")
                a(f"ds_bpermute_b32 v17, v14, v{q}")
                a("s_waitcnt lgkmcnt(0)")
                a(f"v_add_f32 v{q}, v{q}, v17")
            a(f"ds_write_b32 v16, v240 offset:{off}")
            a(f"ds_write_b32 v16, v241 offset:{off+64}")
            a("s_waitcnt lgkmcnt(0)")
            a("s_barrier")
            for p in range(2):
                for w in range(4):
                    a(f"ds_read_b32 v{18+w}, v15 offset:{off+128*w+64*p}")
                a("s_waitcnt lgkmcnt(0)")
                a("v_add_f32 v18, v18, v19")
                a("v_add_f32 v20, v20, v21")
                a(f"v_add_f32 v{240+p}, v18, v20")
        for p in range(2):
            a(f"v_mov_b32 v{240+p}, 0")
            for T in range(9):
                for i in range(4):
                    a(f"v_add_f32 v{240+p}, v{240+p}, v{ACC(T,p)+i}")
        rowred(1024)
        a("s_mov_b32 s49, 0x3ae38e39")
        for p in range(2):
            a(f"v_mul_f32 v{242+p}, s49, v{240+p}")
            a(f"v_mov_b32 v{240+p}, 0")
            for T in range(9):
                for i in range(4):
                    a(f"v_sub_f32 v8, v{ACC(T,p)+i}, v{242+p}")
                    a(f"v_fmac_f32 v{240+p}, v8, v8")
        rowred(2048)
        for p in range(2):
            m, r = 242 + p, 240 + p
            a(f"v_mul_f32 v{r}, s49, v{r}")
            bf16r(a, m)
            bf16r(a, r)
            a(f"v_add_f32 v{r}, 0x3727c5ac, v{r}")
            bf16r(a, r)
            a(f"v_sqrt_f32 v{r}, v{r}")
            a("s_nop 0")
            bf16r(a, r)
            a(f"v_rcp_f32 v{r}, v{r}")
        a("s_lshr_b32 s48, s40, 5")
        a("s_mul_i32 s48, s48, 36864")
        a("s_mul_i32 s49, s3, 9216")
        a("s_add_u32 s48, s48, s49")
        a("v_lshrrev_b32 v12, 1, v4")
        a("v_lshlrev_b32 v12, 9, v12")
        a("v_lshl_add_u32 v12, v3, 4, v12")
        a("v_and_b32 v13, 1, v4")
        a("v_lshl_add_u32 v12, v13, 3, v12")
        a("v_add_u32 v12, s48, v12")
        for T in range(9):
            for p in range(2):
                c = ACC(T, p)
                m, r = 242 + p, 240 + p
                for h in range(2):
                    a(f"v_sub_f32 v8, v{c+2*h}, v{m}")
                    a(f"v_sub_f32 v9, v{c+2*h+1}, v{m}")
                    a("v_cvt_pk_bf16_f32 v8, v8, v9")
                    a("v_and_b32 v9, 0xffff0000, v8")
                    a("v_lshlrev_b32 v8, 16, v8")
                    a(f"v_mul_f32 v8, v8, v{r}")
                    a(f"v_mul_f32 v9, v9, v{r}")
                    a("v_cvt_pk_bf16_f32 v8, v8, v9")
                    a("v_and_b32 v9, 0xffff0000, v8")
                    a("v_lshlrev_b32 v8, 16, v8")
                    a(f"v_mul_f32 v8, v8, v{204+4*T+2*h}")
                    a(f"v_mul_f32 v9, v9, v{204+4*T+2*h+1}")
                    a("v_cvt_pk_bf16_f32 v8, v8, v9")
                    a("v_and_b32 v9, 0xffff0000, v8")
                    a("v_lshlrev_b32 v8, 16, v8")
                    a(f"v_add_f32 v8, v8, v{168+4*T+2*h}")
                    a(f"v_add_f32 v9, v9, v{168+4*T+2*h+1}")
                    a(f"v_cvt_pk_bf16_f32 v{18+h}, v8, v9")
                a(f"s_mov_b32 s48, {1024*T}")
                a(f"buffer_store_dwordx2 v[18:19], v12, s[28:31], s48 offen offset:{256*p}")
                a("s_nop 0")
    a.label("K2_END2")
    stm.dump(3, "K2_END")
    a.label("K2_END")
    a("s_endpgm")
    return kernel_desc("k2_kernel", 256, 64), f"; @launch kernel=k2_kernel grid=(256,1,1) block=(256,1,1) lds={K2_LDS}"


def gen_k2b(a):
    kernel_header(a, "k2b_kernel")
    import k0
    NCP = 2 * k0.NC3 + k0.NC4
    a(f"s_cmp_ge_u32 s2, {512+NCP}")
    a("s_cbranch_scc1 K2B_END")
    a("s_cmp_ge_u32 s2, 512")
    a("s_cbranch_scc1 K2B_COPY")
    a(f"s_load_dwordx2 s[4:5], s[0:1], {KA['ws']}")
    a(f"s_load_dwordx2 s[6:7], s[0:1], {KA['x']}")
    a("v_lshrrev_b32 v2, 6, v0")
    a("v_and_b32 v1, 63, v0")
    a("s_nop 0")
    a("v_readfirstlane_b32 s3, v2")
    a("s_lshl_b32 s24, s2, 2")
    a("s_add_u32 s24, s24, s3")
    a("s_waitcnt lgkmcnt(0)")
    a.srd_ws(8, 4, WS_PART, 4 * S * D * 4)
    a.srd(12, 6, S * D * 2)
    a.srd_ws(16, 4, WS_H2, S * D * 2)
    a.srd_ws(20, 4, WS_MOD, 3456 * 4)
    a.srd_ws(28, 4, WS_X1, S * D * 2)
    a("v_mov_b32 v15, 0x80000000")
    a("v_cmp_gt_u32 vcc, 36, v1")
    a("v_lshlrev_b32 v2, 6, v1")
    a("v_lshlrev_b32 v3, 5, v1")
    a("s_nop 0")
    a("v_cndmask_b32 v2, v15, v2, vcc")
    a("v_cndmask_b32 v3, v15, v3, vcc")
    a("s_mov_b64 s[40:41], vcc")
    a("s_mul_i32 s25, s24, 2304")
    for k in range(4):
        a(f"s_add_u32 s26, s25, {k*S*D*4}")
        for i in range(4):
            a(f"buffer_load_dwordx4 {vr(16+(k*4+i)*4,4)}, v2, s[8:11], s26 offen offset:{16*i}")
    a("s_mul_i32 s27, s24, 1152")
    a("buffer_load_dwordx4 v[80:83], v3, s[12:15], s27 offen")
    a("buffer_load_dwordx4 v[84:87], v3, s[12:15], s27 offen offset:16")
    for sec, base in ((2, 88), (3, 104), (4, 120)):
        a(f"s_mov_b32 s26, {sec*2304}")
        for i in range(4):
            a(f"buffer_load_dwordx4 {vr(base+4*i,4)}, v2, s[20:23], s26 offen offset:{16*i}")
    a("s_waitcnt vmcnt(0)")
    for j in range(16):
        a(f"v_add_f32 v{16+j}, v{16+j}, v{32+j}")
        a(f"v_add_f32 v{48+j}, v{48+j}, v{64+j}")
        a(f"v_add_f32 v{16+j}, v{16+j}, v{48+j}")
    for j in range(0, 16, 2):
        a(f"v_cvt_pk_bf16_f32 v8, v{16+j}, v{17+j}")
        a("v_lshlrev_b32 v9, 16, v8")
        a("v_and_b32 v8, 0xffff0000, v8")
        a(f"v_mul_f32 v9, v9, v{88+j}")
        a(f"v_mul_f32 v8, v8, v{89+j}")
        a("v_cvt_pk_bf16_f32 v8, v9, v8")
        a("v_lshlrev_b32 v9, 16, v8")
        a("v_and_b32 v8, 0xffff0000, v8")
        a(f"v_lshlrev_b32 v10, 16, v{80+j//2}")
        a(f"v_and_b32 v11, 0xffff0000, v{80+j//2}")
        a("v_add_f32 v9, v9, v10")
        a("v_add_f32 v8, v8, v11")
        a(f"v_cvt_pk_bf16_f32 v{80+j//2}, v9, v8")
        a(f"v_lshlrev_b32 v{32+j}, 16, v{80+j//2}")
        a(f"v_and_b32 v{33+j}, 0xffff0000, v{80+j//2}")
    a("buffer_store_dwordx4 v[80:83], v3, s[28:31], s27 offen")
    a("buffer_store_dwordx4 v[84:87], v3, s[28:31], s27 offen offset:16")
    a("v_xor_b32 v13, 32, v1")
    a("v_lshlrev_b32 v13, 2, v13")

    def red64(v):
        for m in (1, 2, 4, 8, 16):
            a(f"ds_swizzle_b32 v5, v{v} offset:{(m<<10)|0x1f}")
            a("s_waitcnt lgkmcnt(0)")
            a(f"v_add_f32 v{v}, v{v}, v5")
        a(f"ds_bpermute_b32 v5, v13, v{v}")
        a("s_waitcnt lgkmcnt(0)")
        a(f"v_add_f32 v{v}, v{v}, v5")
    a("v_add_f32 v6, v32, v33")
    for j in range(2, 16):
        a(f"v_add_f32 v6, v6, v{32+j}")
    red64(6)
    a("s_mov_b32 s25, 0x3ae38e39")
    a("v_mul_f32 v6, s25, v6")
    a("v_mov_b32 v7, 0")
    for j in range(16):
        a(f"v_sub_f32 v8, v{32+j}, v6")
        a("v_fmac_f32 v7, v8, v8")
    a("v_cndmask_b32 v7, 0, v7, s[40:41]")
    red64(7)
    a("v_mul_f32 v7, s25, v7")
    bf16r(a, 6)
    bf16r(a, 7)
    a("v_add_f32 v7, 0x3727c5ac, v7")
    bf16r(a, 7)
    a("v_sqrt_f32 v7, v7")
    a("s_nop 0")
    bf16r(a, 7)
    a("v_rcp_f32 v7, v7")
    a("s_nop 0")
    for j in range(0, 16, 2):
        a(f"v_sub_f32 v8, v{32+j}, v6")
        a(f"v_sub_f32 v9, v{33+j}, v6")
        a("v_cvt_pk_bf16_f32 v8, v8, v9")
        a("v_and_b32 v9, 0xffff0000, v8")
        a("v_lshlrev_b32 v8, 16, v8")
        a("v_mul_f32 v8, v8, v7")
        a("v_mul_f32 v9, v9, v7")
        a("v_cvt_pk_bf16_f32 v8, v8, v9")
        a("v_and_b32 v9, 0xffff0000, v8")
        a("v_lshlrev_b32 v8, 16, v8")
        a(f"v_mul_f32 v8, v8, v{120+j}")
        a(f"v_mul_f32 v9, v9, v{121+j}")
        a("v_cvt_pk_bf16_f32 v8, v8, v9")
        a("v_and_b32 v9, 0xffff0000, v8")
        a("v_lshlrev_b32 v8, 16, v8")
        a(f"v_add_f32 v8, v8, v{104+j}")
        a(f"v_add_f32 v9, v9, v{105+j}")
        a(f"v_cvt_pk_bf16_f32 v{16+j//2}, v8, v9")
    a("s_lshr_b32 s25, s24, 5")
    a("s_mul_i32 s25, s25, 36864")
    a("s_and_b32 s26, s24, 31")
    a("s_lshl_b32 s26, s26, 4")
    a("s_add_u32 s25, s25, s26")
    a("v_lshlrev_b32 v4, 10, v1")
    a("v_cndmask_b32 v4, v15, v4, s[40:41]")
    a("buffer_store_dwordx4 v[16:19], v4, s[16:19], s25 offen")
    a("buffer_store_dwordx4 v[20:23], v4, s[16:19], s25 offen offset:512")
    a("s_endpgm")
    a.label("K2B_COPY")
    a("s_sub_u32 s3, s2, 512")
    k0.gen_copy34(a)
    a.label("K2B_END")
    a("s_endpgm")
    return kernel_desc("k2b_kernel", 136, 48), f"; @launch kernel=k2b_kernel grid=({512+NCP},1,1) block=(256,1,1) lds=0"
```

```python
from common import *
import os
OPT = os.environ.get('K3OPT', '')

UPOFF = 9344
SLOT = 18688
NB = 8
K3_LDS = SLOT * NB
NST = 18
STAG = int(os.environ.get('K3STAG', '8'))
PAUSE = int(os.environ.get('K3PAUSE', '8'))


def gen_k3(a):
    kernel_header(a, "k3_kernel")
    vm = Score(a, "vmcnt")
    lg = Score(a, "lgkmcnt")
    XF = lambda ks: 100 + 4 * ks
    ACC = lambda t: 24 + 16 * t
    FR = lambda i: 8 + 4 * (i & 3)
    a("s_cmp_ge_u32 s2, 256")
    a("s_cbranch_scc1 K3_END")
    stamps = []
    def stamp():
        if 'stamp' not in OPT: return
        i = len(stamps); stamps.append(i)
        a("s_memtime s[90:91]")
        a("s_waitcnt lgkmcnt(0)")
        a(f"s_mov_b32 s{60+i}, s90")
    stamp()
    a(f"s_load_dwordx2 s[4:5], s[0:1], {KA['ws']}")
    a(f"s_load_dwordx2 s[6:7], s[0:1], {KA['wg']}")
    a(f"s_load_dwordx2 s[8:9], s[0:1], {KA['wu']}")
    a("v_lshrrev_b32 v2, 6, v0")
    a("v_and_b32 v1, 63, v0")
    a("s_nop 0")
    a("v_readfirstlane_b32 s3, v2")
    a("s_and_b32 s41, s2, 31")
    a("s_lshr_b32 s40, s2, 5")
    a("s_waitcnt lgkmcnt(0)")
    a.srd_ws(12, 4, WS_W3, W3_BYTES)
    a.srd_ws(16, 4, WS_H2, S * D * 2)
    a.srd_ws(20, 4, WS_HH, S * DF * 2)
    a("s_lshl_b32 s42, s40, 8")
    a("s_lshl_b32 s43, s3, 5")
    a("s_add_u32 s42, s42, s43")
    a("v_and_b32 v3, 31, v1")
    a("v_lshrrev_b32 v4, 5, v1")
    a("v_add_u32 v5, s42, v3")
    a("s_lshr_b32 s43, s42, 5")
    a("s_mul_i32 s43, s43, 36864")
    a("v_lshlrev_b32 v6, 4, v1")
    a("v_add_u32 v6, s43, v6")
    a("s_and_b32 s44, s3, 3")
    a("s_lshr_b32 s45, s3, 2")
    a(f"s_mul_i32 s46, s45, {W3_BYTES//2}")
    a("s_mul_i32 s47, s41, 165888")
    a("s_add_u32 s46, s46, s47")
    a("s_mul_i32 s47, s44, 2304")
    a("s_add_u32 s46, s46, s47")
    a("v_lshlrev_b32 v244, 4, v1")
    a("v_add_u32 v244, s46, v244")
    a(f"s_mul_i32 s49, s44, 2304")
    a(f"s_mul_i32 s50, s45, {UPOFF}")
    a("s_add_u32 s49, s49, s50")

    def dma(st):
        q, c = divmod(st, 6)
        slot = (st % NB) * SLOT
        for j in range(3):
            if j == 2:
                a("s_mov_b64 exec, 0xffff")
            a(f"s_mov_b32 s51, {st*9216 + 1024*j}")
            a(f"s_add_u32 m0, s49, {slot + 1024*j}")
            a("s_nop 0")
            a(f"buffer_load_dwordx4 v244, s[12:15], s51 offen lds"); vm.issue(("dma", st))
        a("s_mov_b64 exec, -1")

    def xload(c):
        a(f"s_mov_b32 s43, {c*6*1024}")
        for k in range(4):
            a(f"buffer_load_dwordx4 {vr(XF(6*c+k),4)}, v6, s[16:19], s43 offen offset:{1024*k}"); vm.issue(("x", c))
        a(f"s_mov_b32 s43, {c*6*1024+4096}")
        for k in range(4, 6):
            a(f"buffer_load_dwordx4 {vr(XF(6*c+k),4)}, v6, s[16:19], s43 offen offset:{1024*(k-4)}"); vm.issue(("x", c))
    PD = int(os.environ.get('K3PD', '3'))
    dma(0)
    xload(0)
    dma(1)
    xload(1)
    a("v_lshrrev_b32 v8, 4, v1")
    a("v_and_b32 v9, 1, v8")
    a(f"v_mul_u32_u24 v9, {UPOFF}, v9")
    a("v_lshrrev_b32 v8, 1, v8")
    a("v_and_b32 v10, 15, v1")
    a("v_lshrrev_b32 v10, 2, v10")
    a("v_lshl_add_u32 v8, v8, 3, v10")
    a("v_mul_u32_u24 v8, 96, v8")
    a("v_and_b32 v10, 3, v1")
    a("v_lshl_add_u32 v8, v10, 3, v8")
    a("v_add_u32 v247, v8, v9")
    a("v_mov_b32 v248, v247")
    a(f"v_add_u32 v251, {4*SLOT}, v247")
    a("v_lshrrev_b32 v249, 4, v5")
    a("s_mov_b32 s54, 147456")
    a("v_mul_lo_u32 v249, v249, s54")
    a("v_and_b32 v8, 15, v5")
    a("v_lshl_add_u32 v249, v8, 4, v249")
    a("v_lshl_add_u32 v249, v4, 8, v249")
    a("s_mul_i32 s54, s41, 4608")
    a("v_add_u32 v249, s54, v249")
    a("s_mov_b32 s54, 2048")
    a("s_mov_b32 s52, 0xc0135761")
    a("s_mov_b32 s53, 0xbdd2d3e8")
    a("v_mov_b32 v250, s52")

    E = 72

    def epi(q, t):
        c = ACC(t)
        L = []
        for i in range(8):
            g = c + i
            x = E + i
            L.append(f"v_mul_f32 v{x}, v{g}, v{g}")
            L.append(f"v_fma_f32 v{x}, v{x}, s53, v250")
            L.append(f"v_mul_f32 v{x}, v{x}, v{g}")
        for i in range(8):
            L.append(f"v_exp_f32 v{E+i}, v{E+i}")
        for i in range(8):
            L.append(f"v_mul_f32 v{E+8+i}, v{c+i}, v{c+8+i}")
        for i in range(8):
            L.append(f"v_add_f32 v{E+i}, 1.0, v{E+i}")
        for i in range(8):
            L.append(f"v_rcp_f32 v{E+i}, v{E+i}")
        L.append("s_nop 0")
        for i in range(8):
            L.append(f"v_mul_f32 v{E+i}, v{E+i}, v{E+8+i}")
        for i in range(4):
            L.append(f"v_cvt_pk_bf16_f32 v{E+16+i}, v{E+2*i}, v{E+2*i+1}")
        L.append("s_nop 1")
        L.append(f"v_permlane32_swap_b32 v{E+16}, v{E+18}")
        L.append(f"v_permlane32_swap_b32 v{E+17}, v{E+19}")
        o = (6 * q + 2 * t) * 256
        if o >= 2048:
            L.append(("st", f"buffer_store_dwordx4 {vr(E+16,4)}, v249, s[20:23], s54 offen offset:{o-2048}"))
        else:
            L.append(("st", f"buffer_store_dwordx4 {vr(E+16,4)}, v249, s[20:23], 0 offen offset:{o}"))
        return L

    ops = []
    pause_at = {}
    done_idx = {}
    R = 3 * (36 + PAUSE) + 2 * STAG
    for r in range(R):
        for t in range(3):
            lr = r - STAG * t
            if lr < 0:
                continue
            q, j = divmod(lr, 36 + PAUSE)
            if q < 3 and j < 36:
                ops.append((q, j, t))
                if j == 35:
                    done_idx[(q, t)] = len(ops) - 1
    nops = len(ops)
    first_idx = {}
    for n, (q, ks, t) in enumerate(ops):
        if ks == 0:
            first_idx[(q, t)] = n
    extra = {i: [] for i in range(nops + 2)}
    busy_until = 0
    for q in range(3):
        for t in range(3):
            L = epi(q, t)
            s0 = max(done_idx[(q, t)] + 4, busy_until)
            s1 = first_idx[(q + 1, t)] if q < 2 else nops + 1
            s0 = min(s0, nops + 1)
            if q == 2:
                s1 = min(s0 + 2 * PAUSE, nops + 1)
                if t == 2:
                    s0 = nops + 1
                    s1 = nops + 2
            n = max(s1 - s0, 1)
            per = -(-len(L) // n)
            for k in range(n):
                extra[min(s0 + k, nops + 1)] += L[k * per:(k + 1) * per]
            busy_until = s0 + -(-len(L) // per)
            assert busy_until <= s1 or q == 2, (q, t, busy_until, s1)

    def emit_extra(i):
        for x in extra[i]:
            if 'noepi' in OPT:
                continue
            if isinstance(x, tuple):
                a(x[1]); vm.issue("st")
            else:
                a(x)

    stage_of = lambda op: 6 * op[0] + op[1] // 6
    last_use = {}
    for n, op in enumerate(ops):
        last_use[stage_of(op)] = n
    landed = set()
    issued = set(range(2))
    xissued = set(range(2))
    xdone = set()

    def sync(st, cur):
        assert st in issued, ("stage not issued", st)
        vm.wait(("dma", st))
        a("s_barrier")
        if 'stamp' in OPT:
            lg.wait_all()
        stamp()
        landed.add(st)
        for f in range(NST):
            if f <= st + PD and f not in issued and (f < NB or last_use[f - NB] < cur):
                dma(f)
                issued.add(f)
                if f < 6:
                    xload(f)
                    xissued.add(f)

    def rd(n, cur):
        q, ks, t = ops[n]
        st = stage_of(ops[n])
        if st not in landed:
            sync(st, cur)
        b = FR(n)
        sl = st % NB
        ad = "v248" if sl < 4 else "v251"
        off = (sl & 3) * SLOT + (ks % 6) * 1536 + 32 * t
        a(f"ds_read_b64_tr_b16 {vr(b,2)}, {ad} offset:{off}"); lg.issue(("a", n))
        a(f"ds_read_b64_tr_b16 {vr(b+2,2)}, {ad} offset:{off+384}"); lg.issue(("a", n))

    for n in range(3):
        rd(n, 0)
    for n in range(nops):
        q, ks, t = ops[n]
        if n + 3 < nops:
            rd(n + 3, n)
        if ks // 6 not in xdone:
            vm.wait(("x", ks // 6))
            xdone.add(ks // 6)
        lg.wait(("a", n))
        cc = "0" if ks == 0 else vr(ACC(t), 16)
        a(f"v_mfma_f32_32x32x16_bf16 {vr(ACC(t),16)}, {vr(FR(n),4)}, {vr(XF(ks),4)}, {cc}")
        emit_extra(n + 1)
    a.nop(14)
    emit_extra(nops + 1)
    assert issued == set(range(NST)), issued
    stamp()
    if 'stamp' in OPT:
        a("s_waitcnt vmcnt(0)")
        stamp()
        a(f"s_load_dwordx2 s[6:7], s[0:1], {KA['dbg']}")
        a("s_waitcnt lgkmcnt(0)")
        a.srd(12, 6, 256)
        a("s_cmp_eq_u32 s2, 37")
        a("s_cbranch_scc0 K3_END")
        a("s_cmp_eq_u32 s3, 0")
        a("s_cbranch_scc0 K3_END")
        for i in stamps:
            a(f"v_mov_b32 v8, s{60+i}")
            a(f"v_mov_b32 v9, {4*i}")
            a("buffer_store_dword v8, v9, s[12:15], 0 offen")
    a.label("K3_END")
    a("s_endpgm")
    return kernel_desc("k3_kernel", 256, 96), f"; @launch kernel=k3_kernel grid=(256,1,1) block=(512,1,1) lds={K3_LDS}"
```

```python
from common import *

SLOT = 128 * 288
NB = 4
K4_LDS = SLOT * NB
NST = 9


def gen_k4(a):
    kernel_header(a, "k4_kernel")
    vm = Score(a, "vmcnt")
    lg = Score(a, "lgkmcnt")
    ACC = lambda T, p: 40 + (T * 2 + p) * 4
    BF = lambda st, kk, p: 112 + ((st % 3) * 4 + kk * 2 + p) * 4
    FR = lambda i: 8 + 4 * (i % 6)
    a("s_cmp_ge_u32 s2, 256")
    a("s_cbranch_scc1 K4_END")
    stm = Stamper(a, "k4")
    stm()
    a(f"s_load_dwordx2 s[4:5], s[0:1], {KA['ws']}")
    a(f"s_load_dwordx2 s[6:7], s[0:1], {KA['wd']}")
    a("v_lshrrev_b32 v2, 6, v0")
    a("v_and_b32 v1, 63, v0")
    a("s_nop 0")
    a("v_readfirstlane_b32 s3, v2")
    a("s_and_b32 s41, s2, 3")
    a("s_lshr_b32 s40, s2, 2")
    a("s_lshr_b32 s42, s40, 4")
    a("s_and_b32 s40, s40, 15")
    a("s_and_b32 s43, s3, 3")
    a("s_lshr_b32 s44, s3, 2")
    a("s_waitcnt lgkmcnt(0)")
    a.srd_ws(12, 4, WS_W4, W4_BYTES)
    a.srd_ws(16, 4, WS_HH, S * DF * 2)
    a.srd_ws(20, 4, WS_PART, 4 * S * D * 4)
    a("v_and_b32 v3, 15, v1")
    a("v_lshrrev_b32 v4, 4, v1")
    a(f"s_mul_i32 s47, s42, {4608*288}")
    a(f"s_mul_i32 s48, s41, {1152*288}")
    a("s_add_u32 s47, s47, s48")
    a("s_mul_i32 s48, s3, 4608")
    a("s_add_u32 s47, s47, s48")
    a("v_lshlrev_b32 v170, 4, v1")
    a("v_add_u32 v170, s47, v170")
    a("s_mul_i32 s49, s3, 4608")

    def dma(st):
        slot = (st % NB) * SLOT
        for j in range(5):
            if j == 4:
                a("s_mov_b64 exec, 0xffffffff")
            a(f"s_mov_b32 s51, {st*36864 + 1024*j}")
            a(f"s_add_u32 m0, s49, {slot + 1024*j}")
            a("s_nop 0")
            a(f"buffer_load_dwordx4 v170, s[12:15], s51 offen lds"); vm.issue(("dma", st))
        a("s_mov_b64 exec, -1")
    a("s_lshl_b32 s45, s40, 7")
    a("s_lshl_b32 s46, s43, 5")
    a("s_add_u32 s45, s45, s46")
    a("v_add_u32 v7, s45, v3")
    a("s_lshr_b32 s46, s45, 4")
    a("s_mul_i32 s46, s46, 147456")
    a("s_mul_i32 s47, s41, 36864")
    a("s_add_u32 s46, s46, s47")
    a("s_lshl_b32 s47, s44, 11")
    a("s_add_u32 s46, s46, s47")
    a("v_lshlrev_b32 v5, 4, v1")
    a("v_add_u32 v5, s46, v5")
    a(f"v_add_u32 v6, 147456, v5")

    def bld(st):
        a(f"s_mov_b32 s52, {4096*st}")
        for kk in range(2):
            for p in range(2):
                a(f"buffer_load_dwordx4 {vr(BF(st,kk,p),4)}, v{5+p}, s[16:19], s52 offen offset:{1024*kk}"); vm.issue(("b", st))
    bld(0)
    dma(0)
    bld(1)
    dma(1)
    dma(2)
    a("v_lshrrev_b32 v9, 2, v3")
    a("v_and_b32 v10, 3, v1")
    a("v_lshl_add_u32 v11, v4, 3, v9")
    a("s_lshl_b32 s46, s44, 6")
    a("v_add_u32 v11, s46, v11")
    a("v_mul_u32_u24 v11, 288, v11")
    a("v_lshl_add_u32 v11, v10, 3, v11")
    a("v_and_b32 v12, 1, v4")
    a("v_lshl_add_u32 v13, v12, 7, v11")
    a("v_mul_u32_u24 v12, 160, v12")
    a("v_sub_u32 v14, v11, v12")
    for i in range(NB):
        a(f"v_add_u32 v{176+2*i}, {i*SLOT}, v13")
        a(f"v_add_u32 v{177+2*i}, {i*SLOT}, v14")
    ops = [(st, kk, T) for st in range(NST) for kk in range(2) for T in range(9)]
    nops = len(ops)

    def rd(n):
        st, kk, T = ops[n]
        b = FR(n)
        ad = 176 + 2 * (st % NB) + (1 if T >= 5 else 0)
        off = kk * 32 * 288 + 32 * T
        a(f"ds_read_b64_tr_b16 {vr(b,2)}, v{ad} offset:{off}"); lg.issue(("a", n))
        a(f"ds_read_b64_tr_b16 {vr(b+2,2)}, v{ad} offset:{off+4*288}"); lg.issue(("a", n))
    LA = 4
    vm.wait(("dma", 0))
    a("s_barrier")
    for n in range(LA):
        rd(n)
    for n in range(nops):
        st, kk, T = ops[n]
        if n % 18 == 0:
            if st + 1 < NST:
                vm.wait(("dma", st + 1))
            vm.wait(("b", st))
            a("s_barrier")
            stm(lg)
            if st + 2 < NST:
                bld(st + 2)
            if st >= 1 and st - 1 + NB < NST:
                dma(st - 1 + NB)
            elif st == 0:
                dma(NB - 1)
        if n + LA < nops:
            rd(n + LA)
        lg.wait(("a", n))
        for p in range(2):
            c = "0" if (st == 0 and kk == 0) else vr(ACC(T, p), 4)
            a(f"v_mfma_f32_16x16x32_bf16 {vr(ACC(T,p),4)}, {vr(FR(n),4)}, {vr(BF(st,kk,p),4)}, {c}")
    a.nop(10)
    a("s_barrier")
    stm(lg)
    a("s_mul_i32 s46, s43, 18432")
    a("v_lshlrev_b32 v8, 4, v1")
    a("v_add_u32 v8, s46, v8")
    a("s_cmp_eq_u32 s44, 0")
    a("s_cbranch_scc1 K4_RED")
    for i in range(18):
        a(f"ds_write_b128 v8, {vr(40+4*i,4)} offset:{1024*i}")
    a("s_waitcnt lgkmcnt(0)")
    a("s_barrier")
    a("s_endpgm")
    a.label("K4_RED")
    a("s_barrier")
    for i in range(18):
        a(f"ds_read_b128 {vr(112+4*i,4)}, v8 offset:{1024*i}")
    a("v_mul_u32_u24 v9, 2304, v7")
    a("v_lshl_add_u32 v9, v4, 4, v9")
    a(f"s_mul_i32 s46, s41, {S*D*4}")
    a("s_mul_i32 s47, s42, 576")
    a("s_add_u32 s46, s46, s47")
    a("v_add_u32 v9, s46, v9")
    a(f"v_add_u32 v10, {16*2304}, v9")
    a("s_waitcnt lgkmcnt(0)")
    for i in range(72):
        a(f"v_add_f32 v{40+i}, v{40+i}, v{112+i}")
    for T in range(9):
        for p in range(2):
            a(f"buffer_store_dwordx4 {vr(ACC(T,p),4)}, v{9+p}, s[20:23], 0 offen offset:{64*T}")
    stm.dump(3, "K4_END")
    a.label("K4_END")
    a("s_endpgm")
    return kernel_desc("k4_kernel", 192, 64), f"; @launch kernel=k4_kernel grid=(256,1,1) block=(512,1,1) lds={K4_LDS}"
```

```python
import sys
from common import *
import k0, k1, k2, k2f, k3, k4

HDR = open("adaLN_cond__linear_kernel_hedgehog__glu_gated_geglu__prompt.s.ref").read().split("; Override launch geometry")[0]

def build(which=("k0","k1","k2f","k3","k4","k5")):
    a = Asm()
    descs, launches = [], []
    gens = dict(k0=k0.gen_k0, k1=k1.gen_k1, k2=k2.gen_k2, k2f=k2f.gen_k2f, k2b=k2.gen_k2b, k3=k3.gen_k3, k4=k4.gen_k4, k5=k0.gen_k5)
    for n in which:
        d, l = gens[n](a)
        descs.append(d); launches.append(l)
    out = HDR + "\n".join(launches) + "\n"
    out += '.amdgcn_target "amdgcn-amd-amdhsa--gfx950"\n.text\n'
    out += a.text()
    out += '.section .rodata,"a"\n'
    for d in descs:
        out += ".p2align 6\n" + d
    return out

if __name__ == "__main__":
    s = build()
    dst = sys.argv[1] if len(sys.argv) > 1 else "adaLN_cond__linear_kernel_hedgehog__glu_gated_geglu__prompt.s"
    open(dst,"w").write(s)
    print(len(s))
```

```python
from common import *

NMOD = 108
NLN = 64
GPW = 2048
NC1 = -(-(W1_BYTES // 16) // GPW)
NC3 = (W3_BYTES // 32) // GPW
NC4 = (W4_BYTES // 16) // GPW
NC2 = -(-(18 * 36 * 64) // GPW)
NK0 = NMOD + NLN + NC1 + NC2
LOG2E = 0x3fb8aa3b


def bf16r(a, v, tmp=None):
    a(f"v_cvt_pk_bf16_f32 v{v}, v{v}, v{v}")
    a(f"v_and_b32 v{v}, 0xffff0000, v{v}")


def gen_k0(a):
    kernel_header(a, "k0_kernel")
    a(f"s_cmp_ge_u32 s2, {NK0}")
    a("s_cbranch_scc1 K0_END")
    a(f"s_cmp_ge_u32 s2, {NMOD+NLN}")
    a("s_cbranch_scc1 K0_COPY")
    a(f"s_load_dwordx2 s[4:5], s[0:1], {KA['ws']}")
    a(f"s_load_dwordx2 s[6:7], s[0:1], {KA['c']}")
    a(f"s_load_dwordx2 s[8:9], s[0:1], {KA['wmod']}")
    a(f"s_load_dwordx2 s[10:11], s[0:1], {KA['x']}")
    a("s_waitcnt lgkmcnt(0)")
    a(f"s_cmp_ge_u32 s2, {NMOD}")
    a("s_cbranch_scc1 K0_LN")
    a.srd(12, 6, 1152)
    a.srd(16, 8, 576 * 6912)
    a.srd_ws(20, 4, WS_MOD, 3456 * 4)
    a("v_and_b32 v1, 15, v0")
    a("v_lshrrev_b32 v2, 4, v0")
    a("v_mul_u32_u24 v3, 6912, v2")
    a("v_lshl_add_u32 v3, v1, 2, v3")
    a("s_lshl_b32 s24, s2, 6")
    a("v_add_u32 v3, s24, v3")
    a("s_mov_b32 s25, 0")
    for i in range(36):
        a(f"buffer_load_dword v{10+i}, v3, s[16:19], s25 offen")
        a(f"s_add_u32 s25, s25, {16*6912}")
    a("v_lshlrev_b32 v4, 1, v0")
    a("buffer_load_ushort v50, v4, s[12:15], 0 offen")
    a("buffer_load_ushort v51, v4, s[12:15], 0 offen offset:512")
    a("buffer_load_ushort v52, v4, s[12:15], 0 offen offset:1024")
    a("s_waitcnt vmcnt(0)")
    a(f"s_mov_b32 s26, {LOG2E}")
    for j in range(3):
        v = 50 + j
        a(f"v_lshlrev_b32 v{v}, 16, v{v}")
        a(f"v_mul_f32 v53, s26, v{v}")
        a("v_sub_f32 v53, 0, v53")
        a("v_exp_f32 v53, v53")
        a("s_nop 0")
        a("v_add_f32 v53, 1.0, v53")
        a("v_rcp_f32 v53, v53")
        a("s_nop 0")
        a(f"v_mul_f32 v{v}, v{v}, v53")
        bf16r(a, v)
    a("v_lshlrev_b32 v4, 2, v0")
    a("ds_write_b32 v4, v50")
    a("ds_write_b32 v4, v51 offset:1024")
    a("ds_write_b32 v4, v52 offset:2048")
    a("s_waitcnt lgkmcnt(0)")
    a("s_barrier")
    a("v_lshlrev_b32 v4, 2, v2")
    for i in range(36):
        a(f"ds_read_b32 v{60+i}, v4 offset:{64*i}")
    a("v_mov_b32 v98, 0")
    a("v_mov_b32 v99, 0")
    a("s_waitcnt lgkmcnt(0)")
    for i in range(36):
        a(f"v_lshlrev_b32 v7, 16, v{10+i}")
        a(f"v_and_b32 v8, 0xffff0000, v{10+i}")
        a(f"v_fmac_f32 v98, v7, v{60+i}")
        a(f"v_fmac_f32 v99, v8, v{60+i}")
    a("v_lshlrev_b32 v4, 7, v2")
    a("v_lshl_add_u32 v4, v1, 3, v4")
    a("ds_write_b64 v4, v[98:99] offset:4096")
    a("s_waitcnt lgkmcnt(0)")
    a("s_barrier")
    a("v_cmp_gt_u32 vcc, 32, v0")
    a("s_and_saveexec_b64 s[28:29], vcc")
    a("s_cbranch_execz K0_END")
    a("v_lshlrev_b32 v4, 2, v0")
    for i in range(16):
        a(f"ds_read_b32 v{10+i}, v4 offset:{4096+128*i}")
    a("s_waitcnt lgkmcnt(0)")
    for i in range(1, 16):
        a(f"v_add_f32 v10, v10, v{10+i}")
    bf16r(a, 10)
    a("s_mov_b32 s27, 0")
    a("s_cmp_ge_u32 s2, 18")
    a("s_cselect_b32 s27, 1, 0")
    a("s_cmp_ge_u32 s2, 36")
    a("s_cselect_b32 s27, 0, s27")
    a("s_cmp_ge_u32 s2, 72")
    a("s_cselect_b32 s27, 1, s27")
    a("s_cmp_ge_u32 s2, 90")
    a("s_cselect_b32 s27, 0, s27")
    a("s_cmp_eq_u32 s27, 0")
    a("s_cbranch_scc1 K0_MODST")
    a("v_add_f32 v10, 1.0, v10")
    bf16r(a, 10)
    a.label("K0_MODST")
    a("s_lshl_b32 s24, s2, 7")
    a("v_add_u32 v4, s24, v4")
    a("buffer_store_dword v10, v4, s[20:23], 0 offen")
    a("s_endpgm")
    a.label("K0_LN")
    a(f"s_sub_u32 s3, s2, {NMOD}")
    a.srd(12, 10, S * D * 2)
    a.srd_ws(16, 4, WS_XN, S * D * 2)
    a.srd_ws(20, 4, WS_KV, KV_BYTES)
    a("s_lshl_b32 s24, s3, 12")
    a("v_lshl_add_u32 v1, v0, 4, s24")
    a("v_mov_b32 v4, 0")
    a("v_mov_b32 v5, 0")
    a("v_mov_b32 v6, 0")
    a("v_mov_b32 v7, 0")
    a("buffer_store_dwordx4 v[4:7], v1, s[20:23], 0 offen")
    a("v_lshrrev_b32 v1, 3, v0")
    a("s_lshl_b32 s24, s3, 5")
    a("v_add_u32 v1, s24, v1")
    a("v_mul_u32_u24 v1, 1152, v1")
    a("v_and_b32 v2, 7, v0")
    a("v_lshl_add_u32 v1, v2, 4, v1")
    for i in range(9):
        a(f"buffer_load_dwordx4 v[{12+4*i}:{15+4*i}], v1, s[12:15], 0 offen offset:{128*i}")
    a("s_waitcnt vmcnt(0)")
    for i in range(36):
        a(f"v_lshlrev_b32 v{48+2*i}, 16, v{12+i}")
        a(f"v_and_b32 v{49+2*i}, 0xffff0000, v{12+i}")
    a("v_mov_b32 v3, 0")
    a("v_mov_b32 v4, 0")
    for i in range(0, 72, 2):
        a(f"v_add_f32 v3, v3, v{48+i}")
        a(f"v_add_f32 v4, v4, v{49+i}")
    a("v_add_f32 v3, v3, v4")

    def red8(v):
        for m in (1, 2, 4):
            a(f"ds_swizzle_b32 v5, v{v} offset:{(m<<10)|0x1f}")
            a("s_waitcnt lgkmcnt(0)")
            a(f"v_add_f32 v{v}, v{v}, v5")
    red8(3)
    a(f"s_mov_b32 s25, 0x3ae38e39")
    a("v_mul_f32 v3, s25, v3")
    a("v_mov_b32 v4, 0")
    a("v_mov_b32 v6, 0")
    for i in range(0, 72, 2):
        a(f"v_sub_f32 v7, v{48+i}, v3")
        a(f"v_sub_f32 v8, v{49+i}, v3")
        a("v_fmac_f32 v4, v7, v7")
        a("v_fmac_f32 v6, v8, v8")
    a("v_add_f32 v4, v4, v6")
    red8(4)
    a("v_mul_f32 v4, s25, v4")
    bf16r(a, 3)
    bf16r(a, 4)
    a("v_add_f32 v4, 0x3727c5ac, v4")
    bf16r(a, 4)
    a("v_sqrt_f32 v4, v4")
    a("s_nop 0")
    bf16r(a, 4)
    a("v_rcp_f32 v4, v4")
    a("s_nop 0")
    for i in range(36):
        a(f"v_sub_f32 v7, v{48+2*i}, v3")
        a(f"v_sub_f32 v8, v{49+2*i}, v3")
        a("v_cvt_pk_bf16_f32 v7, v7, v8")
        a("v_and_b32 v8, 0xffff0000, v7")
        a("v_lshlrev_b32 v7, 16, v7")
        a("v_mul_f32 v7, v7, v4")
        a("v_mul_f32 v8, v8, v4")
        a(f"v_cvt_pk_bf16_f32 v{12+i}, v7, v8")
    a("v_lshrrev_b32 v1, 3, v0")
    a("v_add_u32 v1, s24, v1")
    a("v_lshrrev_b32 v2, 4, v1")
    a("v_mul_u32_u24 v2, 18432, v2")
    a("v_and_b32 v1, 15, v1")
    a("v_lshl_add_u32 v2, v1, 4, v2")
    a("v_and_b32 v1, 7, v0")
    a("v_lshl_add_u32 v2, v1, 8, v2")
    for i in range(9):
        a(f"s_mov_b32 s26, {2048*i}")
        a(f"buffer_store_dwordx4 v[{12+4*i}:{15+4*i}], v2, s[16:19], s26 offen")
    a("s_endpgm")
    a.label("K0_COPY")
    a(f"s_load_dwordx2 s[4:5], s[0:1], {KA['ws']}")
    a(f"s_load_dwordx2 s[6:7], s[0:1], {KA['wqkv']}")
    a(f"s_load_dwordx2 s[8:9], s[0:1], {KA['wg']}")
    a(f"s_load_dwordx2 s[10:11], s[0:1], {KA['wu']}")
    a(f"s_load_dwordx2 s[12:13], s[0:1], {KA['wo']}")
    a(f"s_sub_u32 s3, s2, {NMOD+NLN}")
    a("s_waitcnt lgkmcnt(0)")
    a(f"s_cmp_ge_u32 s3, {NC1}")
    a("s_cbranch_scc1 K0_C2")

    def copy(src_addr):
        for j in range(8):
            a(f"v_add_u32 v3, {256*j}, v2")
            src_addr(3, 4)
            a(f"buffer_load_dwordx4 {vr(16+4*j,4)}, v4, s[16:19], 0 offen")
        a("v_lshlrev_b32 v2, 4, v2")
        a("s_waitcnt vmcnt(0)")
        for j in range(8):
            a(f"s_mov_b32 s26, {4096*j}")
            a(f"buffer_store_dwordx4 {vr(16+4*j,4)}, v2, s[20:23], s26 offen")
        a("s_endpgm")
    a.srd(16, 6, 576 * 3456)
    a.srd_ws(20, 4, WS_W1, W1_BYTES)
    a("s_lshl_b32 s24, s3, 11")
    a("v_add_u32 v2, s24, v0")
    a(f"s_mov_b32 s24, {magic(9216)}")
    a("v_mov_b32 v15, 32")
    for j in range(8):
        a(f"v_add_u32 v3, {256*j}, v2")
        a("v_mul_hi_u32 v5, v3, s24")
        a("v_mul_u32_u24 v6, 9216, v5")
        a("v_sub_u32 v6, v3, v6")
        a("v_lshrrev_b32 v7, 9, v6")
        a("v_bfe_u32 v8, v6, 6, 3")
        a("v_bfe_u32 v9, v6, 5, 1")
        a("v_and_b32 v10, 31, v6")
        a("v_lshrrev_b32 v11, 3, v10")
        a("v_bfe_u32 v12, v10, 1, 2")
        a("v_and_b32 v13, 1, v10")
        a("v_lshlrev_b32 v7, 5, v7")
        a("v_lshl_add_u32 v7, v11, 3, v7")
        a("v_lshl_add_u32 v7, v9, 2, v7")
        a("v_add_u32 v7, v7, v12")
        a("v_mul_u32_u24 v7, 3456, v7")
        a("v_mul_u32_u24 v5, 72, v5")
        a("v_add_u32 v7, v7, v5")
        a("v_mul_u32_u24 v11, 1152, v13")
        a("v_lshl_add_u32 v11, v8, 3, v11")
        a("v_lshlrev_b32 v12, 5, v8")
        a("v_lshl_add_u32 v12, v13, 4, v12")
        a("v_add_u32 v12, 2144, v12")
        a("v_cmp_gt_u32 vcc, 5, v8")
        a("v_mov_b32 v14, 8")
        a("s_nop 0")
        a("v_cndmask_b32 v11, v12, v11, vcc")
        a("v_cndmask_b32 v14, v14, 32, vcc") if False else a("v_cndmask_b32 v14, 8, v15, vcc")
        a("v_add_u32 v7, v7, v11")
        a("v_add_u32 v14, v7, v14")
        a(f"buffer_load_dwordx2 {vr(16+4*j,2)}, v7, s[16:19], 0 offen")
        a(f"buffer_load_dwordx2 {vr(18+4*j,2)}, v14, s[16:19], 0 offen")
    a("v_lshlrev_b32 v2, 4, v2")
    a("s_waitcnt vmcnt(0)")
    for j in range(8):
        a(f"s_mov_b32 s26, {4096*j}")
        a(f"buffer_store_dwordx4 {vr(16+4*j,4)}, v2, s[20:23], s26 offen")
    a("s_endpgm")
    a.label("K0_C2")
    a(f"s_sub_u32 s3, s3, {NC1}")
    a.srd(16, 12, 576 * 1152)
    a.srd_ws(20, 4, WS_W2, W2_BYTES)
    a("s_lshl_b32 s24, s3, 11")
    a("v_add_u32 v2, s24, v0")
    a(f"s_mov_b32 s24, {magic(2304)}")

    def a2(i, o):
        a(f"v_mul_hi_u32 v5, v{i}, s24")
        a("v_mul_u32_u24 v6, 2304, v5")
        a(f"v_sub_u32 v6, v{i}, v6")
        a("v_lshrrev_b32 v7, 6, v6")
        a("v_bfe_u32 v8, v6, 5, 1")
        a("v_bfe_u32 v9, v6, 3, 2")
        a("v_bfe_u32 v10, v6, 1, 2")
        a("v_and_b32 v11, 1, v6")
        a("v_lshlrev_b32 v5, 5, v5")
        a("v_lshl_add_u32 v5, v9, 3, v5")
        a("v_lshl_add_u32 v5, v8, 2, v5")
        a("v_add_u32 v5, v5, v10")
        a("v_mul_u32_u24 v5, 1152, v5")
        a("v_lshl_add_u32 v5, v7, 5, v5")
        a(f"v_lshl_add_u32 v{o}, v11, 4, v5")
    copy(a2)
    a.label("K0_END")
    a("s_endpgm")
    return kernel_desc("k0_kernel", 128, 48), f"; @launch kernel=k0_kernel grid=({NK0},1,1) block=(256,1,1) lds=8192"


def gen_k5(a):
    kernel_header(a, "k5_kernel")
    NWG = S * D // 4 // 256
    a(f"s_cmp_ge_u32 s2, {NWG}")
    a("s_cbranch_scc1 K5_END")
    a(f"s_load_dwordx2 s[4:5], s[0:1], {KA['ws']}")
    a(f"s_load_dwordx2 s[6:7], s[0:1], {KA['out']}")
    a("s_waitcnt lgkmcnt(0)")
    a.srd_ws(8, 4, WS_PART, 4 * S * D * 4)
    a.srd_ws(12, 4, WS_X1, S * D * 2)
    a.srd_ws(16, 4, WS_MOD, 3456 * 4)
    a.srd(20, 6, S * D * 2)
    a("s_lshl_b32 s24, s2, 8")
    a("v_add_u32 v1, s24, v0")
    a("v_lshlrev_b32 v2, 4, v1")
    a("v_lshlrev_b32 v3, 3, v1")
    P = S * D * 4
    for k in range(4):
        a(f"s_mov_b32 s25, {k*P}")
        a(f"buffer_load_dwordx4 v[{8+4*k}:{11+4*k}], v2, s[8:11], s25 offen")
    a("buffer_load_dwordx2 v[24:25], v3, s[12:15], 0 offen")
    a(f"s_mov_b32 s26, {magic(144)}")
    a("v_mul_hi_u32 v4, v1, s26")
    a("v_mul_u32_u24 v4, 144, v4")
    a("v_sub_u32 v4, v1, v4")
    a("v_lshlrev_b32 v4, 4, v4")
    a(f"s_mov_b32 s25, {5*576*4}")
    a("buffer_load_dwordx4 v[28:31], v4, s[16:19], s25 offen")
    a("s_waitcnt vmcnt(0)")
    for j in range(4):
        a(f"v_add_f32 v{8+j}, v{8+j}, v{12+j}")
        a(f"v_add_f32 v{16+j}, v{16+j}, v{20+j}")
        a(f"v_add_f32 v{8+j}, v{8+j}, v{16+j}")
    a("v_cvt_pk_bf16_f32 v12, v8, v9")
    a("v_cvt_pk_bf16_f32 v13, v10, v11")
    a("v_lshlrev_b32 v8, 16, v12")
    a("v_and_b32 v9, 0xffff0000, v12")
    a("v_lshlrev_b32 v10, 16, v13")
    a("v_and_b32 v11, 0xffff0000, v13")
    for j in range(4):
        a(f"v_mul_f32 v{8+j}, v{8+j}, v{28+j}")
    a("v_cvt_pk_bf16_f32 v12, v8, v9")
    a("v_cvt_pk_bf16_f32 v13, v10, v11")
    a("v_lshlrev_b32 v8, 16, v12")
    a("v_and_b32 v9, 0xffff0000, v12")
    a("v_lshlrev_b32 v10, 16, v13")
    a("v_and_b32 v11, 0xffff0000, v13")
    a("v_lshlrev_b32 v16, 16, v24")
    a("v_and_b32 v17, 0xffff0000, v24")
    a("v_lshlrev_b32 v18, 16, v25")
    a("v_and_b32 v19, 0xffff0000, v25")
    for j in range(4):
        a(f"v_add_f32 v{8+j}, v{8+j}, v{16+j}")
    a("v_cvt_pk_bf16_f32 v12, v8, v9")
    a("v_cvt_pk_bf16_f32 v13, v10, v11")
    a("buffer_store_dwordx2 v[12:13], v3, s[20:23], 0 offen")
    a.label("K5_END")
    a("s_endpgm")
    return kernel_desc("k5_kernel", 32, 32), f"; @launch kernel=k5_kernel grid=({NWG},1,1) block=(256,1,1) lds=0"


def gen_copy34(a):
    a(f"s_load_dwordx2 s[4:5], s[0:1], {KA['ws']}")
    a(f"s_load_dwordx2 s[8:9], s[0:1], {KA['wg']}")
    a(f"s_load_dwordx2 s[10:11], s[0:1], {KA['wu']}")
    a(f"s_load_dwordx2 s[12:13], s[0:1], {KA['wd']}")
    a("s_waitcnt lgkmcnt(0)")
    def copy(src_addr):
        for j in range(8):
            a(f"v_add_u32 v3, {256*j}, v2")
            src_addr(3, 4)
            a(f"buffer_load_dwordx4 {vr(16+4*j,4)}, v4, s[16:19], 0 offen")
        a("v_lshlrev_b32 v2, 4, v2")
        a("s_waitcnt vmcnt(0)")
        for j in range(8):
            a(f"s_mov_b32 s26, {4096*j}")
            a(f"buffer_store_dwordx4 {vr(16+4*j,4)}, v2, s[20:23], s26 offen")
        a("s_endpgm")
    a(f"s_cmp_ge_u32 s3, {2*NC3}")
    a("s_cbranch_scc1 K0_C4")
    a(f"s_cmp_ge_u32 s3, {NC3}")
    a("s_cselect_b32 s8, s10, s8")
    a("s_cselect_b32 s9, s11, s9")
    a(f"s_cselect_b32 s27, {NC3}, 0")
    a.srd(16, 8, 576 * 9216)
    a.srd_ws(20, 4, WS_W3, W3_BYTES)
    a("s_lshl_b32 s24, s3, 11")
    a("v_add_u32 v2, s24, v0")
    a("s_lshl_b32 s27, s27, 11")
    a(f"s_mov_b32 s24, {magic(3456)}")
    a(f"s_mov_b32 s25, {magic(6)}")

    def a3(i, o):
        a(f"v_subrev_u32 v{o}, s27, v{i}")
        a(f"v_mul_hi_u32 v5, v{o}, s24")
        a("v_mul_u32_u24 v6, 3456, v5")
        a(f"v_sub_u32 v6, v{o}, v6")
        a("v_mul_hi_u32 v7, v6, s25")
        a("v_mul_u32_u24 v8, 6, v7")
        a("v_sub_u32 v8, v6, v8")
        a("v_mul_u32_u24 v7, 9216, v7")
        a("v_mul_u32_u24 v5, 96, v5")
        a("v_lshl_add_u32 v7, v8, 4, v7")
        a(f"v_add_u32 v{o}, v7, v5")
    copy(a3)
    a.label("K0_C4")
    a(f"s_sub_u32 s3, s3, {2*NC3}")
    a.srd(16, 12, DF * 1152)
    a.srd_ws(20, 4, WS_W4, W4_BYTES)
    a("s_lshl_b32 s24, s3, 11")
    a("v_add_u32 v2, s24, v0")
    a(f"s_mov_b32 s24, {magic(5184)}")
    a(f"s_mov_b32 s25, {magic(18)}")
    a("s_mov_b32 s27, 82944")

    def a4(i, o):
        a(f"v_lshrrev_b32 v5, 4, v{i}")
        a("v_mul_hi_u32 v5, v5, s24")
        a("v_mul_lo_u32 v6, v5, s27")
        a(f"v_sub_u32 v6, v{i}, v6")
        a("v_mul_hi_u32 v7, v6, s25")
        a("v_mul_u32_u24 v8, 18, v7")
        a("v_sub_u32 v8, v6, v8")
        a("v_add_u32 v9, 10, v8")
        a("v_subrev_u32 v10, 18, v9")
        a("v_cmp_gt_u32 vcc, 18, v9")
        a("s_nop 1")
        a("v_cndmask_b32 v9, v10, v9, vcc")
        a("v_and_b32 v10, 8, v7")
        a("v_cmp_eq_u32 vcc, 0, v10")
        a("s_nop 1")
        a("v_cndmask_b32 v8, v9, v8, vcc")
        a("v_mul_u32_u24 v7, 1152, v7")
        a("v_mul_u32_u24 v5, 288, v5")
        a("v_lshl_add_u32 v7, v8, 4, v7")
        a(f"v_add_u32 v{o}, v7, v5")
    copy(a4)


def gen_copy34_big(a):
    NCP = 2 * NC3 + NC4
    a(f"s_load_dwordx2 s[4:5], s[0:1], {KA['ws']}")
    a(f"s_load_dwordx2 s[8:9], s[0:1], {KA['wg']}")
    a(f"s_load_dwordx2 s[10:11], s[0:1], {KA['wu']}")
    a(f"s_load_dwordx2 s[12:13], s[0:1], {KA['wd']}")
    a("s_lshl_b32 s30, s3, 2")
    a("s_add_u32 s31, s30, 4")
    a(f"s_min_u32 s31, s31, {NCP}")
    a("s_waitcnt lgkmcnt(0)")
    a.label("CPB_LOOP")
    a("s_cmp_ge_u32 s30, s31")
    a("s_cbranch_scc1 CPB_END")
    a("s_mov_b32 s3, s30")
    a("s_add_u32 s30, s30, 1")

    def copy(src_addr):
        for j in range(8):
            a(f"v_add_u32 v3, {256*j}, v2")
            src_addr(3, 4)
            a(f"buffer_load_dwordx4 {vr(16+4*j,4)}, v4, s[16:19], 0 offen")
        a("v_lshlrev_b32 v2, 4, v2")
        a("s_waitcnt vmcnt(0)")
        for j in range(8):
            a(f"s_mov_b32 s26, {4096*j}")
            a(f"buffer_store_dwordx4 {vr(16+4*j,4)}, v2, s[20:23], s26 offen")
        a("s_branch CPB_LOOP")
    a(f"s_cmp_ge_u32 s3, {2*NC3}")
    a("s_cbranch_scc1 CPB_C4")
    a(f"s_cmp_ge_u32 s3, {NC3}")
    a("s_cselect_b32 s28, s10, s8")
    a("s_cselect_b32 s29, s11, s9")
    a(f"s_cselect_b32 s27, {NC3}, 0")
    a.srd(16, 28, 576 * 9216)
    a.srd_ws(20, 4, WS_W3, W3_BYTES)
    a("s_lshl_b32 s24, s3, 11")
    a("v_add_u32 v2, s24, v0")
    a("s_lshl_b32 s27, s27, 11")
    a(f"s_mov_b32 s24, {magic(3456)}")
    a(f"s_mov_b32 s25, {magic(6)}")

    def a3(i, o):
        a(f"v_subrev_u32 v{o}, s27, v{i}")
        a(f"v_mul_hi_u32 v5, v{o}, s24")
        a("v_mul_u32_u24 v6, 3456, v5")
        a(f"v_sub_u32 v6, v{o}, v6")
        a("v_mul_hi_u32 v7, v6, s25")
        a("v_mul_u32_u24 v8, 6, v7")
        a("v_sub_u32 v8, v6, v8")
        a("v_mul_u32_u24 v7, 9216, v7")
        a("v_mul_u32_u24 v5, 96, v5")
        a("v_lshl_add_u32 v7, v8, 4, v7")
        a(f"v_add_u32 v{o}, v7, v5")
    copy(a3)
    a.label("CPB_C4")
    a(f"s_sub_u32 s3, s3, {2*NC3}")
    a.srd(16, 12, DF * 1152)
    a.srd_ws(20, 4, WS_W4, W4_BYTES)
    a("s_lshl_b32 s24, s3, 11")
    a("v_add_u32 v2, s24, v0")
    a(f"s_mov_b32 s24, {magic(5184)}")
    a(f"s_mov_b32 s25, {magic(18)}")
    a("s_mov_b32 s27, 82944")

    def a4(i, o):
        a(f"v_lshrrev_b32 v5, 4, v{i}")
        a("v_mul_hi_u32 v5, v5, s24")
        a("v_mul_lo_u32 v6, v5, s27")
        a(f"v_sub_u32 v6, v{i}, v6")
        a("v_mul_hi_u32 v7, v6, s25")
        a("v_mul_u32_u24 v8, 18, v7")
        a("v_sub_u32 v8, v6, v8")
        a("v_add_u32 v9, 10, v8")
        a("v_subrev_u32 v10, 18, v9")
        a("v_cmp_gt_u32 vcc, 18, v9")
        a("s_nop 1")
        a("v_cndmask_b32 v9, v10, v9, vcc")
        a("v_and_b32 v10, 8, v7")
        a("v_cmp_eq_u32 vcc, 0, v10")
        a("s_nop 1")
        a("v_cndmask_b32 v8, v9, v8, vcc")
        a("v_mul_u32_u24 v7, 1152, v7")
        a("v_mul_u32_u24 v5, 288, v5")
        a("v_lshl_add_u32 v7, v8, 4, v7")
        a(f"v_add_u32 v{o}, v7, v5")
    copy(a4)
    a.label("CPB_END")
```

```python
from common import *
import k0

L_T = 0
L_O = 51200
O_STR = 1168
SLOT = 36864
SLOTS = [90112, 126976, 0, 36864]
K2_LDS = 163840
L_RED = 80000
NCOPY = 128


def bf16r(a, v):
    a(f"v_cvt_pk_bf16_f32 v{v}, v{v}, v{v}")
    a(f"v_and_b32 v{v}, 0xffff0000, v{v}")


def gen_k2f(a):
    kernel_header(a, "k2_kernel")
    vm = Score(a, "vmcnt")
    lg = Score(a, "lgkmcnt")
    a(f"s_cmp_ge_u32 s2, {128+NCOPY}")
    a("s_cbranch_scc1 K2_END")
    a("s_cmp_ge_u32 s2, 128")
    a("s_cbranch_scc1 K2_COPY")
    stm = Stamper(a, "k2")
    stm()
    a(f"s_load_dwordx2 s[4:5], s[0:1], {KA['ws']}")
    a(f"s_load_dwordx2 s[8:9], s[0:1], {KA['x']}")
    a("v_lshrrev_b32 v2, 6, v0")
    a("v_and_b32 v1, 63, v0")
    a("s_nop 0")
    a("v_readfirstlane_b32 s3, v2")
    a("s_lshl_b32 s40, s2, 4")
    a("s_waitcnt lgkmcnt(0)")
    a.srd_ws(12, 4, WS_W2, W2_BYTES)
    a.srd(16, 8, S * D * 2)
    a.srd_ws(20, 4, WS_MOD, 3456 * 4)
    a.srd_ws(24, 4, WS_KV, KV_BYTES)
    a.srd_ws(28, 4, WS_PHIQ, PHIQ_BYTES)
    a.srd_ws(32, 4, WS_X1, S * D * 2)
    a.srd_ws(36, 4, WS_H2, S * D * 2)
    a("v_and_b32 v3, 15, v1")
    a("v_lshrrev_b32 v4, 4, v1")
    a("s_mul_i32 s47, s3, 9216")
    a("v_lshlrev_b32 v230, 4, v1")
    a("v_add_u32 v230, s47, v230")

    def dma(st):
        slot = SLOTS[st % 4]
        for j in range(9):
            a(f"s_mov_b32 s48, {st*SLOT + 1024*j}")
            a(f"s_add_u32 m0, s47, {slot + 1024*j}")
            a("s_nop 0")
            a(f"buffer_load_dwordx4 v230, s[12:15], s48 offen lds"); vm.issue(("dma", st))
    a("s_lshl_b32 s48, s2, 3")
    a("s_lshl_b32 s49, s3, 1")
    a("s_add_u32 s48, s48, s49")
    a("s_mul_i32 s48, s48, 5120")
    a("v_lshlrev_b32 v8, 4, v1")
    a("v_add_u32 v8, s48, v8")
    PH = lambda hl, u: 100 + (hl * 5 + u) * 4
    for hl in range(2):
        a(f"s_mov_b32 s48, {hl*5120}")
        for u in range(4):
            a(f"buffer_load_dwordx4 {vr(PH(hl,u),4)}, v8, s[28:31], s48 offen offset:{1024*u}"); vm.issue("phi")
        a(f"s_mov_b32 s48, {hl*5120+4096}")
        a(f"buffer_load_dwordx4 {vr(PH(hl,4),4)}, v8, s[28:31], s48 offen"); vm.issue("phi")
    a("v_lshlrev_b32 v8, 4, v0")
    a("v_lshlrev_b32 v9, 3, v0")
    for half in range(2):
        js = range(0, 13) if half == 0 else range(13, 25)
        for j in js:
            a(f"s_mov_b32 s48, {4096*j}")
            a(f"buffer_load_dwordx4 {vr(24+4*(j-js[0]),4)}, v8, s[24:27], s48 offen"); vm.issue("kv")
        dma(half)
        vm.wait("kv")
        for j in js:
            b = 24 + 4 * (j - js[0])
            a(f"v_cvt_pk_bf16_f32 v{b}, v{b}, v{b+1}")
            a(f"v_cvt_pk_bf16_f32 v{b+1}, v{b+2}, v{b+3}")
            a(f"ds_write_b64 v9, {vr(b,2)} offset:{L_T+2048*j}")
    a("s_waitcnt lgkmcnt(0)")
    a("s_barrier")
    stm()
    a("v_lshrrev_b32 v9, 2, v3")
    a("v_and_b32 v10, 3, v1")
    a("v_cmp_eq_u32 s[50:51], v9, v4")
    a("v_mul_u32_u24 v11, 1600, v9")
    a("v_mul_u32_u24 v12, 80, v10")
    a("s_mul_i32 s48, s3, 12800")
    a("v_add3_u32 v11, v11, v12, s48")
    a(f"v_mul_u32_u24 v12, {O_STR}, v3")
    a("v_mul_u32_u24 v13, 36, v4")
    a("s_mul_i32 s48, s3, 288")
    a("v_add3_u32 v12, v12, v13, s48")
    a(f"v_add_u32 v12, {L_O}, v12")
    a("s_mov_b32 s49, 0x358637bd")
    PACC = 180
    AFR = lambda t, u: (24 + (t * 5 + u) * 4) if t < 3 else (140 + ((t - 3) * 5 + u) * 4)
    for hl in range(2):
        for t in range(5):
            for u in range(5):
                a(f"ds_read_b128 {vr(AFR(t,u),4)}, v11 offset:{L_T + hl*6400 + t*320 + 16*u}")
        a("s_waitcnt lgkmcnt(0)")
        for t in range(5):
            for u in range(5):
                for i in range(4):
                    a(f"v_cndmask_b32 v{AFR(t,u)+i}, 0, v{AFR(t,u)+i}, s[50:51]")
        a.nop(2)
        for t in range(5):
            for u in range(5):
                c = "0" if u == 0 else vr(PACC + 4 * t, 4)
                a(f"v_mfma_f32_16x16x32_bf16 {vr(PACC+4*t,4)}, {vr(AFR(t,u),4)}, {vr(PH(hl,u),4)}, {c}")
        a.nop(10)
        den = PACC + 18
        bf16r(a, den)
        a(f"v_add_f32 v{den}, s49, v{den}")
        bf16r(a, den)
        a(f"v_rcp_f32 v{den}, v{den}")
        for j in range(0, 18, 2):
            a(f"v_cvt_pk_bf16_f32 v14, v{PACC+j}, v{PACC+j+1}")
            a(f"v_lshlrev_b32 v15, 16, v14")
            a(f"v_and_b32 v14, 0xffff0000, v14")
            a(f"v_mul_f32 v15, v15, v{den}")
            a(f"v_mul_f32 v14, v14, v{den}")
            a(f"v_cvt_pk_bf16_f32 v14, v15, v14")
            a(f"ds_write_b32 v12, v14 offset:{hl*144 + 2*j}")
    a("s_waitcnt lgkmcnt(0)")
    a("s_barrier")
    stm()
    a(f"v_mul_u32_u24 v8, {O_STR}, v3")
    a("v_lshl_add_u32 v8, v4, 4, v8")
    OB = lambda ks: 150 + 4 * ks
    for ks in range(18):
        a(f"ds_read_b128 {vr(OB(ks),4)}, v8 offset:{L_O+64*ks}")
    a("s_waitcnt lgkmcnt(0)")
    a("s_barrier")
    dma(2)
    dma(3)
    a("v_add_u32 v5, s40, v3")
    a("v_mul_u32_u24 v5, 1152, v5")
    a("s_mul_i32 s48, s3, 288")
    a("v_lshl_add_u32 v5, v4, 3, v5")
    a("v_add_u32 v5, s48, v5")
    for T in range(9):
        a(f"buffer_load_dwordx2 {vr(60+2*T,2)}, v5, s[16:19], 0 offen offset:{32*T}"); vm.issue("x")
    a("s_mul_i32 s48, s3, 576")
    a("v_lshlrev_b32 v6, 4, v4")
    a("v_add_u32 v6, s48, v6")
    a(f"s_mov_b32 s52, {2*2304}")
    for T in range(9):
        a(f"buffer_load_dwordx4 {vr(100+4*T,4)}, v6, s[20:23], s52 offen offset:{64*T}"); vm.issue("ga")
    a("v_lshlrev_b32 v11, 3, v1")
    a("v_add_u32 v11, s47, v11")
    for i in range(4):
        a(f"v_add_u32 v{224+i}, {SLOTS[i]}, v11")
    ACC = lambda T: 24 + 4 * T
    FR = lambda i: 8 + 4 * (i & 3)
    cnt = 0
    lg.q = []
    for st in range(18):
        vm.wait(("dma", st))
        a("s_barrier")
        if st in (0, 6, 12):
            stm(lg)
        if 1 <= st and st + 3 < 18:
            dma(st + 3)
        ad = f"v{224 + st % 4}"

        def rd(T):
            b = FR(cnt + T)
            a(f"ds_read_b64_tr_b16 {vr(b,2)}, {ad} offset:{1024*T}"); lg.issue(("a", st, T))
            a(f"ds_read_b64_tr_b16 {vr(b+2,2)}, {ad} offset:{1024*T+512}"); lg.issue(("a", st, T))
        for T in range(3):
            rd(T)
        for T in range(9):
            if T + 3 < 9:
                rd(T + 3)
            lg.wait(("a", st, T))
            c = "0" if st == 0 else vr(ACC(T), 4)
            a(f"v_mfma_f32_16x16x32_bf16 {vr(ACC(T),4)}, {vr(FR(cnt+T),4)}, {vr(OB(st),4)}, {c}")
        cnt += 9
    vm.wait_all()
    a.nop(10)
    stm(lg)
    for T in range(9):
        c = ACC(T)
        for h in range(2):
            a(f"v_cvt_pk_bf16_f32 v8, v{c+2*h}, v{c+2*h+1}")
            a("v_lshlrev_b32 v9, 16, v8")
            a("v_and_b32 v8, 0xffff0000, v8")
            a(f"v_mul_f32 v9, v9, v{100+4*T+2*h}")
            a(f"v_mul_f32 v8, v8, v{100+4*T+2*h+1}")
            a("v_cvt_pk_bf16_f32 v8, v9, v8")
            a("v_lshlrev_b32 v9, 16, v8")
            a("v_and_b32 v8, 0xffff0000, v8")
            a(f"v_lshlrev_b32 v10, 16, v{60+2*T+h}")
            a(f"v_and_b32 v11, 0xffff0000, v{60+2*T+h}")
            a("v_add_f32 v9, v9, v10")
            a("v_add_f32 v8, v8, v11")
            a(f"v_cvt_pk_bf16_f32 v{60+2*T+h}, v9, v8")
            a(f"v_lshlrev_b32 v{c+2*h}, 16, v{60+2*T+h}")
            a(f"v_and_b32 v{c+2*h+1}, 0xffff0000, v{60+2*T+h}")
    for T in range(9):
        a(f"buffer_store_dwordx2 {vr(60+2*T,2)}, v5, s[32:35], 0 offen offset:{32*T}"); vm.issue("st")
    a(f"s_mov_b32 s52, {3*2304}")
    a(f"s_mov_b32 s53, {4*2304}")
    for T in range(9):
        a(f"buffer_load_dwordx4 {vr(140+4*T,4)}, v6, s[20:23], s52 offen offset:{64*T}"); vm.issue("sb")
        a(f"buffer_load_dwordx4 {vr(176+4*T,4)}, v6, s[20:23], s53 offen offset:{64*T}"); vm.issue("sb")
    a("v_xor_b32 v13, 16, v1")
    a("v_lshlrev_b32 v13, 2, v13")
    a("v_xor_b32 v14, 32, v1")
    a("v_lshlrev_b32 v14, 2, v14")
    a("s_lshl_b32 s48, s3, 6")
    a("v_lshlrev_b32 v15, 2, v3")
    a(f"v_add_u32 v15, {L_RED}, v15")
    a("v_add_u32 v16, s48, v15")

    def rowred(off):
        a("ds_bpermute_b32 v17, v13, v12")
        a("s_waitcnt lgkmcnt(0)")
        a("v_add_f32 v12, v12, v17")
        a("ds_bpermute_b32 v17, v14, v12")
        a("s_waitcnt lgkmcnt(0)")
        a("v_add_f32 v12, v12, v17")
        a(f"ds_write_b32 v16, v12 offset:{off}")
        a("s_waitcnt lgkmcnt(0)")
        a("s_barrier")
        for w in range(4):
            a(f"ds_read_b32 v{18+w}, v15 offset:{off+64*w}")
        a("s_waitcnt lgkmcnt(0)")
        a("v_add_f32 v12, v18, v19")
        a("v_add_f32 v17, v20, v21")
        a("v_add_f32 v12, v12, v17")
    a("v_mov_b32 v12, 0")
    for i in range(36):
        a(f"v_add_f32 v12, v12, v{24+i}")
    rowred(0)
    a("s_mov_b32 s49, 0x3ae38e39")
    a("v_mul_f32 v22, s49, v12")
    a("v_mov_b32 v12, 0")
    for i in range(36):
        a(f"v_sub_f32 v8, v{24+i}, v22")
        a("v_fmac_f32 v12, v8, v8")
    rowred(256)
    a("v_mul_f32 v23, s49, v12")
    bf16r(a, 22)
    bf16r(a, 23)
    a("v_add_f32 v23, 0x3727c5ac, v23")
    bf16r(a, 23)
    a("v_sqrt_f32 v23, v23")
    a("s_nop 0")
    bf16r(a, 23)
    a("v_rcp_f32 v23, v23")
    a("s_lshr_b32 s48, s40, 5")
    a("s_mul_i32 s48, s48, 36864")
    a("s_add_u32 s48, s48, s47")
    a("s_and_b32 s49, s40, 16")
    a("s_lshl_b32 s49, s49, 4")
    a("s_add_u32 s48, s48, s49")
    a("v_lshrrev_b32 v12, 1, v4")
    a("v_lshlrev_b32 v12, 9, v12")
    a("v_lshl_add_u32 v12, v3, 4, v12")
    a("v_and_b32 v13, 1, v4")
    a("v_lshl_add_u32 v12, v13, 3, v12")
    a("v_add_u32 v12, s48, v12")
    vm.wait("sb")
    for T in range(9):
        c = ACC(T)
        for h in range(2):
            a(f"v_sub_f32 v8, v{c+2*h}, v22")
            a(f"v_sub_f32 v9, v{c+2*h+1}, v22")
            a("v_cvt_pk_bf16_f32 v8, v8, v9")
            a("v_and_b32 v9, 0xffff0000, v8")
            a("v_lshlrev_b32 v8, 16, v8")
            a("v_mul_f32 v8, v8, v23")
            a("v_mul_f32 v9, v9, v23")
            a("v_cvt_pk_bf16_f32 v8, v8, v9")
            a("v_and_b32 v9, 0xffff0000, v8")
            a("v_lshlrev_b32 v8, 16, v8")
            a(f"v_mul_f32 v8, v8, v{176+4*T+2*h}")
            a(f"v_mul_f32 v9, v9, v{176+4*T+2*h+1}")
            a("v_cvt_pk_bf16_f32 v8, v8, v9")
            a("v_and_b32 v9, 0xffff0000, v8")
            a("v_lshlrev_b32 v8, 16, v8")
            a(f"v_add_f32 v8, v8, v{140+4*T+2*h}")
            a(f"v_add_f32 v9, v9, v{140+4*T+2*h+1}")
            a(f"v_cvt_pk_bf16_f32 v{78+2*T+h}, v8, v9")
        a(f"s_mov_b32 s48, {1024*T}")
        a(f"buffer_store_dwordx2 {vr(78+2*T,2)}, v12, s[36:39], s48 offen")
    stm.dump(3, "K2_END")
    a("s_endpgm")
    a.label("K2_COPY")
    a("s_sub_u32 s3, s2, 128")
    k0.gen_copy34_big(a)
    a.label("K2_END")
    a("s_endpgm")
    return kernel_desc("k2_kernel", 256, 64), f"; @launch kernel=k2_kernel grid=({128+NCOPY},1,1) block=(256,1,1) lds={K2_LDS}"
```

```python
from common import *
import k0

L_T = 0
L_O = 51200
O_STR = 1168
SLOT = 36864
SLOTS = [90112, 126976, 0, 36864]
K2_LDS = 163840
L_RED = 89600
L_MODS = 73728
NCOPY = 128


def bf16r(a, v):
    a(f"v_cvt_pk_bf16_f32 v{v}, v{v}, v{v}")
    a(f"v_and_b32 v{v}, 0xffff0000, v{v}")


def gen_k2f(a):
    kernel_header(a, "k2_kernel")
    vm = Score(a, "vmcnt")
    lg = Score(a, "lgkmcnt")
    a(f"s_cmp_ge_u32 s2, {128+NCOPY}")
    a("s_cbranch_scc1 K2_END")
    a("s_cmp_ge_u32 s2, 128")
    a("s_cbranch_scc1 K2_COPY")
    stm = Stamper(a, "k2")
    stm()
    a(f"s_load_dwordx2 s[4:5], s[0:1], {KA['ws']}")
    a(f"s_load_dwordx2 s[8:9], s[0:1], {KA['x']}")
    a("v_lshrrev_b32 v2, 6, v0")
    a("v_and_b32 v1, 63, v0")
    a("s_nop 0")
    a("v_readfirstlane_b32 s3, v2")
    a("s_lshl_b32 s40, s2, 4")
    a("s_waitcnt lgkmcnt(0)")
    a.srd_ws(12, 4, WS_W2, W2_BYTES)
    a.srd(16, 8, S * D * 2)
    a.srd_ws(20, 4, WS_MOD, 3456 * 4)
    a.srd_ws(24, 4, WS_KV, KV_BYTES)
    a.srd_ws(28, 4, WS_PHIQ, PHIQ_BYTES)
    a.srd_ws(32, 4, WS_X1, S * D * 2)
    a.srd_ws(36, 4, WS_H2, S * D * 2)
    a("v_and_b32 v3, 15, v1")
    a("v_lshrrev_b32 v4, 4, v1")
    a("s_mul_i32 s47, s3, 9216")
    a("v_lshlrev_b32 v230, 4, v1")
    a("v_add_u32 v230, s47, v230")

    def dma(st):
        slot = SLOTS[st % 4]
        for j in range(9):
            a(f"s_mov_b32 s48, {st*SLOT + 1024*j}")
            a(f"s_add_u32 m0, s47, {slot + 1024*j}")
            a("s_nop 0")
            a(f"buffer_load_dwordx4 v230, s[12:15], s48 offen lds"); vm.issue(("dma", st))
    a("v_lshlrev_b32 v8, 4, v1")
    for j in range(2):
        a(f"s_lshl_b32 s48, s3, 11")
        a(f"s_add_u32 s48, s48, {1024*j}")
        a(f"s_add_u32 m0, s48, {L_MODS}")
        a(f"s_add_u32 s48, s48, {2*2304}")
        a(f"buffer_load_dwordx4 v8, s[20:23], s48 offen lds"); vm.issue("mods")
    a("s_lshl_b32 s48, s2, 3")
    a("s_lshl_b32 s49, s3, 1")
    a("s_add_u32 s48, s48, s49")
    a("s_mul_i32 s48, s48, 5120")
    a("v_lshlrev_b32 v8, 4, v1")
    a("v_add_u32 v8, s48, v8")
    PH = lambda hl, u: 100 + (hl * 5 + u) * 4
    for hl in range(2):
        a(f"s_mov_b32 s48, {hl*5120}")
        for u in range(4):
            a(f"buffer_load_dwordx4 {vr(PH(hl,u),4)}, v8, s[28:31], s48 offen offset:{1024*u}"); vm.issue("phi")
        a(f"s_mov_b32 s48, {hl*5120+4096}")
        a(f"buffer_load_dwordx4 {vr(PH(hl,4),4)}, v8, s[28:31], s48 offen"); vm.issue("phi")
    a("v_lshlrev_b32 v8, 4, v0")
    a("v_lshlrev_b32 v9, 3, v0")
    for half in range(2):
        js = range(0, 13) if half == 0 else range(13, 25)
        for j in js:
            a(f"s_mov_b32 s48, {4096*j}")
            a(f"buffer_load_dwordx4 {vr(24+4*(j-js[0]),4)}, v8, s[24:27], s48 offen"); vm.issue("kv")
        dma(half)
        vm.wait("kv")
        for j in js:
            b = 24 + 4 * (j - js[0])
            a(f"v_cvt_pk_bf16_f32 v{b}, v{b}, v{b+1}")
            a(f"v_cvt_pk_bf16_f32 v{b+1}, v{b+2}, v{b+3}")
            a(f"ds_write_b64 v9, {vr(b,2)} offset:{L_T+2048*j}")
    a("s_waitcnt lgkmcnt(0)")
    a("s_barrier")
    stm()
    a("v_lshrrev_b32 v9, 2, v3")
    a("v_and_b32 v10, 3, v1")
    a("v_cmp_eq_u32 s[50:51], v9, v4")
    a("v_mul_u32_u24 v11, 1600, v9")
    a("v_mul_u32_u24 v12, 80, v10")
    a("s_mul_i32 s48, s3, 12800")
    a("v_add3_u32 v11, v11, v12, s48")
    a(f"v_mul_u32_u24 v12, {O_STR}, v3")
    a("v_mul_u32_u24 v13, 36, v4")
    a("s_mul_i32 s48, s3, 288")
    a("v_add3_u32 v12, v12, v13, s48")
    a(f"v_add_u32 v12, {L_O}, v12")
    a("s_mov_b32 s49, 0x358637bd")
    PACC = 180
    AFR = lambda t, u: (24 + (t * 5 + u) * 4) if t < 3 else (140 + ((t - 3) * 5 + u) * 4)
    for hl in range(2):
        for t in range(5):
            for u in range(5):
                a(f"ds_read_b128 {vr(AFR(t,u),4)}, v11 offset:{L_T + hl*6400 + t*320 + 16*u}")
        a("s_waitcnt lgkmcnt(0)")
        for t in range(5):
            for u in range(5):
                for i in range(4):
                    a(f"v_cndmask_b32 v{AFR(t,u)+i}, 0, v{AFR(t,u)+i}, s[50:51]")
        a.nop(2)
        for t in range(5):
            for u in range(5):
                c = "0" if u == 0 else vr(PACC + 4 * t, 4)
                a(f"v_mfma_f32_16x16x32_bf16 {vr(PACC+4*t,4)}, {vr(AFR(t,u),4)}, {vr(PH(hl,u),4)}, {c}")
        a.nop(10)
        den = PACC + 18
        bf16r(a, den)
        a(f"v_add_f32 v{den}, s49, v{den}")
        bf16r(a, den)
        a(f"v_rcp_f32 v{den}, v{den}")
        for j in range(0, 18, 2):
            a(f"v_cvt_pk_bf16_f32 v14, v{PACC+j}, v{PACC+j+1}")
            a(f"v_lshlrev_b32 v15, 16, v14")
            a(f"v_and_b32 v14, 0xffff0000, v14")
            a(f"v_mul_f32 v15, v15, v{den}")
            a(f"v_mul_f32 v14, v14, v{den}")
            a(f"v_cvt_pk_bf16_f32 v14, v15, v14")
            a(f"ds_write_b32 v12, v14 offset:{hl*144 + 2*j}")
    a("s_waitcnt lgkmcnt(0)")
    a("s_barrier")
    stm()
    a(f"v_mul_u32_u24 v8, {O_STR}, v3")
    a("v_lshl_add_u32 v8, v4, 4, v8")
    OB = lambda ks: 150 + 4 * ks
    for ks in range(18):
        a(f"ds_read_b128 {vr(OB(ks),4)}, v8 offset:{L_O+64*ks}")
    a("s_waitcnt lgkmcnt(0)")
    a("s_barrier")
    dma(2)
    dma(3)
    a("v_add_u32 v5, s40, v3")
    a("v_mul_u32_u24 v5, 1152, v5")
    a("s_mul_i32 s48, s3, 288")
    a("v_lshl_add_u32 v5, v4, 3, v5")
    a("v_add_u32 v5, s48, v5")
    for T in range(9):
        a(f"buffer_load_dwordx2 {vr(60+2*T,2)}, v5, s[16:19], 0 offen offset:{32*T}"); vm.issue("x")
    a("s_mul_i32 s48, s3, 576")
    a("v_lshlrev_b32 v6, 4, v4")
    a("v_add_u32 v6, s48, v6")
    a(f"v_add_u32 v6, {L_MODS}, v6")
    a("v_lshlrev_b32 v11, 3, v1")
    a("v_add_u32 v11, s47, v11")
    for i in range(4):
        a(f"v_add_u32 v{224+i}, {SLOTS[i]}, v11")
    ACC = lambda T: 24 + 4 * T
    FR = lambda i: 8 + 4 * (i & 3)
    cnt = 0
    lg.q = []
    for st in range(18):
        vm.wait(("dma", st))
        a("s_barrier")
        if st in (0, 6, 12):
            stm(lg)
        if 1 <= st and st + 3 < 18:
            dma(st + 3)
        ad = f"v{224 + st % 4}"

        def rd(T):
            b = FR(cnt + T)
            a(f"ds_read_b64_tr_b16 {vr(b,2)}, {ad} offset:{1024*T}"); lg.issue(("a", st, T))
            a(f"ds_read_b64_tr_b16 {vr(b+2,2)}, {ad} offset:{1024*T+512}"); lg.issue(("a", st, T))
        for T in range(3):
            rd(T)
        for T in range(9):
            if T + 3 < 9:
                rd(T + 3)
            lg.wait(("a", st, T))
            c = "0" if st == 0 else vr(ACC(T), 4)
            a(f"v_mfma_f32_16x16x32_bf16 {vr(ACC(T),4)}, {vr(FR(cnt+T),4)}, {vr(OB(st),4)}, {c}")
        cnt += 9
    vm.wait_all()
    for T in range(9):
        a(f"ds_read_b128 {vr(100+4*T,4)}, v6 offset:{64*T}")
        a(f"ds_read_b128 {vr(140+4*T,4)}, v6 offset:{2304+64*T}")
        a(f"ds_read_b128 {vr(176+4*T,4)}, v6 offset:{4608+64*T}")
    a("s_waitcnt lgkmcnt(0)")
    lg.q = []
    stm(lg)
    for T in range(9):
        c = ACC(T)
        for h in range(2):
            a(f"v_cvt_pk_bf16_f32 v8, v{c+2*h}, v{c+2*h+1}")
            a("v_lshlrev_b32 v9, 16, v8")
            a("v_and_b32 v8, 0xffff0000, v8")
            a(f"v_mul_f32 v9, v9, v{100+4*T+2*h}")
            a(f"v_mul_f32 v8, v8, v{100+4*T+2*h+1}")
            a("v_cvt_pk_bf16_f32 v8, v9, v8")
            a("v_lshlrev_b32 v9, 16, v8")
            a("v_and_b32 v8, 0xffff0000, v8")
            a(f"v_lshlrev_b32 v10, 16, v{60+2*T+h}")
            a(f"v_and_b32 v11, 0xffff0000, v{60+2*T+h}")
            a("v_add_f32 v9, v9, v10")
            a("v_add_f32 v8, v8, v11")
            a(f"v_cvt_pk_bf16_f32 v{60+2*T+h}, v9, v8")
            a(f"v_lshlrev_b32 v{c+2*h}, 16, v{60+2*T+h}")
            a(f"v_and_b32 v{c+2*h+1}, 0xffff0000, v{60+2*T+h}")
    for T in range(9):
        a(f"buffer_store_dwordx2 {vr(60+2*T,2)}, v5, s[32:35], 0 offen offset:{32*T}"); vm.issue("st")
    a("v_xor_b32 v13, 16, v1")
    a("v_lshlrev_b32 v13, 2, v13")
    a("v_xor_b32 v14, 32, v1")
    a("v_lshlrev_b32 v14, 2, v14")
    a("s_lshl_b32 s48, s3, 6")
    a("v_lshlrev_b32 v15, 2, v3")
    a(f"v_add_u32 v15, {L_RED}, v15")
    a("v_add_u32 v16, s48, v15")

    def rowred(off):
        a("ds_bpermute_b32 v17, v13, v12")
        a("s_waitcnt lgkmcnt(0)")
        a("v_add_f32 v12, v12, v17")
        a("ds_bpermute_b32 v17, v14, v12")
        a("s_waitcnt lgkmcnt(0)")
        a("v_add_f32 v12, v12, v17")
        a(f"ds_write_b32 v16, v12 offset:{off}")
        a("s_waitcnt lgkmcnt(0)")
        a("s_barrier")
        for w in range(4):
            a(f"ds_read_b32 v{18+w}, v15 offset:{off+64*w}")
        a("s_waitcnt lgkmcnt(0)")
        a("v_add_f32 v12, v18, v19")
        a("v_add_f32 v17, v20, v21")
        a("v_add_f32 v12, v12, v17")
    a("v_mov_b32 v12, 0")
    for i in range(36):
        a(f"v_add_f32 v12, v12, v{24+i}")
    rowred(0)
    a("s_mov_b32 s49, 0x3ae38e39")
    a("v_mul_f32 v22, s49, v12")
    a("v_mov_b32 v12, 0")
    for i in range(36):
        a(f"v_sub_f32 v8, v{24+i}, v22")
        a("v_fmac_f32 v12, v8, v8")
    rowred(256)
    a("v_mul_f32 v23, s49, v12")
    bf16r(a, 22)
    bf16r(a, 23)
    a("v_add_f32 v23, 0x3727c5ac, v23")
    bf16r(a, 23)
    a("v_sqrt_f32 v23, v23")
    a("s_nop 0")
    bf16r(a, 23)
    a("v_rcp_f32 v23, v23")
    a("s_lshr_b32 s48, s40, 5")
    a("s_mul_i32 s48, s48, 36864")
    a("s_add_u32 s48, s48, s47")
    a("s_and_b32 s49, s40, 16")
    a("s_lshl_b32 s49, s49, 4")
    a("s_add_u32 s48, s48, s49")
    a("v_lshrrev_b32 v12, 1, v4")
    a("v_lshlrev_b32 v12, 9, v12")
    a("v_lshl_add_u32 v12, v3, 4, v12")
    a("v_and_b32 v13, 1, v4")
    a("v_lshl_add_u32 v12, v13, 3, v12")
    a("v_add_u32 v12, s48, v12")
    for T in range(9):
        c = ACC(T)
        for h in range(2):
            a(f"v_sub_f32 v8, v{c+2*h}, v22")
            a(f"v_sub_f32 v9, v{c+2*h+1}, v22")
            a("v_cvt_pk_bf16_f32 v8, v8, v9")
            a("v_and_b32 v9, 0xffff0000, v8")
            a("v_lshlrev_b32 v8, 16, v8")
            a("v_mul_f32 v8, v8, v23")
            a("v_mul_f32 v9, v9, v23")
            a("v_cvt_pk_bf16_f32 v8, v8, v9")
            a("v_and_b32 v9, 0xffff0000, v8")
            a("v_lshlrev_b32 v8, 16, v8")
            a(f"v_mul_f32 v8, v8, v{176+4*T+2*h}")
            a(f"v_mul_f32 v9, v9, v{176+4*T+2*h+1}")
            a("v_cvt_pk_bf16_f32 v8, v8, v9")
            a("v_and_b32 v9, 0xffff0000, v8")
            a("v_lshlrev_b32 v8, 16, v8")
            a(f"v_add_f32 v8, v8, v{140+4*T+2*h}")
            a(f"v_add_f32 v9, v9, v{140+4*T+2*h+1}")
            a(f"v_cvt_pk_bf16_f32 v{78+2*T+h}, v8, v9")
        a(f"s_mov_b32 s48, {1024*T}")
        a(f"buffer_store_dwordx2 {vr(78+2*T,2)}, v12, s[36:39], s48 offen")
    stm.dump(3, "K2_END")
    a("s_endpgm")
    a.label("K2_COPY")
    a("s_sub_u32 s3, s2, 128")
    k0.gen_copy34_big(a)
    a.label("K2_END")
    a("s_endpgm")
    return kernel_desc("k2_kernel", 256, 64), f"; @launch kernel=k2_kernel grid=({128+NCOPY},1,1) block=(256,1,1) lds={K2_LDS}"
```

```python
from common import *

SLOT = 128 * 288
NB = 4
K4_LDS = 2 * 75776
NST = 9


def gen_k4(a):
    kernel_header(a, "k4_kernel")
    vm = Score(a, "vmcnt")
    lg = Score(a, "lgkmcnt")
    ACC = lambda T, p: 40 + (T * 2 + p) * 4
    BF = lambda st, kk, p: 112 + ((st % 3) * 4 + kk * 2 + p) * 4
    FR = lambda i: 8 + 4 * (i % 6)
    a("s_cmp_ge_u32 s2, 256")
    a("s_cbranch_scc1 K4_END")
    stm = Stamper(a, "k4")
    stm()
    a(f"s_load_dwordx2 s[4:5], s[0:1], {KA['ws']}")
    a(f"s_load_dwordx2 s[6:7], s[0:1], {KA['wd']}")
    a("v_lshrrev_b32 v2, 6, v0")
    a("v_and_b32 v1, 63, v0")
    a("s_nop 0")
    a("v_readfirstlane_b32 s3, v2")
    a("s_and_b32 s41, s2, 3")
    a("s_lshr_b32 s40, s2, 2")
    a("s_lshr_b32 s42, s40, 4")
    a("s_and_b32 s40, s40, 15")
    a("s_and_b32 s43, s3, 3")
    a("s_lshr_b32 s44, s3, 2")
    a("s_waitcnt lgkmcnt(0)")
    a.srd_ws(12, 4, WS_W4, W4_BYTES)
    a.srd_ws(16, 4, WS_HH, S * DF * 2)
    a.srd_ws(20, 4, WS_PART, 4 * S * D * 4)
    a("v_and_b32 v3, 15, v1")
    a("v_lshrrev_b32 v4, 4, v1")
    a(f"s_mul_i32 s47, s42, {4608*288}")
    a(f"s_mul_i32 s48, s41, {1152*288}")
    a("s_add_u32 s47, s47, s48")
    a("s_mul_i32 s48, s3, 4608")
    a("s_add_u32 s47, s47, s48")
    a("v_lshlrev_b32 v170, 4, v1")
    a("v_add_u32 v170, s47, v170")
    a("s_mul_i32 s49, s3, 4608")

    def dma(st):
        slot = (st % NB) * SLOT
        for j in range(5):
            if j == 4:
                a("s_mov_b64 exec, 0xffffffff")
            a(f"s_mov_b32 s51, {st*36864 + 1024*j}")
            a(f"s_add_u32 m0, s49, {slot + 1024*j}")
            a("s_nop 0")
            a(f"buffer_load_dwordx4 v170, s[12:15], s51 offen lds"); vm.issue(("dma", st))
        a("s_mov_b64 exec, -1")
    a("s_lshl_b32 s45, s40, 7")
    a("s_lshl_b32 s46, s43, 5")
    a("s_add_u32 s45, s45, s46")
    a("v_add_u32 v7, s45, v3")
    a("s_lshr_b32 s46, s45, 4")
    a("s_mul_i32 s46, s46, 147456")
    a("s_mul_i32 s47, s41, 36864")
    a("s_add_u32 s46, s46, s47")
    a("s_lshl_b32 s47, s44, 11")
    a("s_add_u32 s46, s46, s47")
    a("v_lshlrev_b32 v5, 4, v1")
    a("v_add_u32 v5, s46, v5")
    a(f"v_add_u32 v6, 147456, v5")

    def bld(st):
        a(f"s_mov_b32 s52, {4096*st}")
        for kk in range(2):
            for p in range(2):
                a(f"buffer_load_dwordx4 {vr(BF(st,kk,p),4)}, v{5+p}, s[16:19], s52 offen offset:{1024*kk}"); vm.issue(("b", st))
    bld(0)
    dma(0)
    bld(1)
    dma(1)
    dma(2)
    a("v_lshrrev_b32 v9, 2, v3")
    a("v_and_b32 v10, 3, v1")
    a("v_lshl_add_u32 v11, v4, 3, v9")
    a("s_lshl_b32 s46, s44, 6")
    a("v_add_u32 v11, s46, v11")
    a("v_mul_u32_u24 v11, 288, v11")
    a("v_lshl_add_u32 v11, v10, 3, v11")
    a("v_and_b32 v12, 1, v4")
    a("v_lshl_add_u32 v13, v12, 7, v11")
    a("v_mul_u32_u24 v12, 160, v12")
    a("v_sub_u32 v14, v11, v12")
    for i in range(NB):
        a(f"v_add_u32 v{176+2*i}, {i*SLOT}, v13")
        a(f"v_add_u32 v{177+2*i}, {i*SLOT}, v14")
    ops = [(st, kk, T) for st in range(NST) for kk in range(2) for T in range(9)]
    nops = len(ops)

    def rd(n):
        st, kk, T = ops[n]
        b = FR(n)
        ad = 176 + 2 * (st % NB) + (1 if T >= 5 else 0)
        off = kk * 32 * 288 + 32 * T
        a(f"ds_read_b64_tr_b16 {vr(b,2)}, v{ad} offset:{off}"); lg.issue(("a", n))
        a(f"ds_read_b64_tr_b16 {vr(b+2,2)}, v{ad} offset:{off+4*288}"); lg.issue(("a", n))
    LA = 4
    vm.wait(("dma", 0))
    a("s_barrier")
    for n in range(LA):
        rd(n)
    for n in range(nops):
        st, kk, T = ops[n]
        if n % 18 == 0:
            if st + 1 < NST:
                vm.wait(("dma", st + 1))
            vm.wait(("b", st))
            a("s_barrier")
            stm(lg)
            if st + 2 < NST:
                bld(st + 2)
            if st >= 1 and st - 1 + NB < NST:
                dma(st - 1 + NB)
            elif st == 0:
                dma(NB - 1)
        if n + LA < nops:
            rd(n + LA)
        lg.wait(("a", n))
        for p in range(2):
            c = "0" if (st == 0 and kk == 0) else vr(ACC(T, p), 4)
            a(f"v_mfma_f32_16x16x32_bf16 {vr(ACC(T,p),4)}, {vr(FR(n),4)}, {vr(BF(st,kk,p),4)}, {c}")
    a.nop(10)
    a("s_barrier")
    stm(lg)
    a("s_lshl_b32 s46, s43, 5")
    a("v_add_u32 v8, s46, v3")
    a("v_mul_u32_u24 v8, 592, v8")
    a("v_lshl_add_u32 v8, v4, 4, v8")
    a("s_mul_i32 s46, s44, 75776")
    a("v_add_u32 v8, s46, v8")
    for T in range(9):
        for p in range(2):
            a(f"ds_write_b128 v8, {vr(ACC(T,p),4)} offset:{p*16*592 + 64*T}")
    a(f"s_mov_b32 s45, {magic(36)}")
    a(f"s_mul_i32 s46, s41, {S*D*4}")
    a("s_mul_i32 s47, s42, 576")
    a("s_add_u32 s46, s46, s47")
    a("s_mul_i32 s47, s40, 128*2304")
    a("s_add_u32 s46, s46, s47")
    for i in range(9):
        a(f"v_add_u32 v9, {512*i}, v0")
        a("v_mul_hi_u32 v10, v9, s45")
        a("v_mul_u32_u24 v11, 36, v10")
        a("v_sub_u32 v11, v9, v11")
        a("v_mul_u32_u24 v12, 592, v10")
        a(f"v_lshl_add_u32 v{20+i}, v11, 4, v12")
        a("v_mul_u32_u24 v12, 2304, v10")
        a(f"v_lshl_add_u32 v{30+i}, v11, 4, v12")
    a("s_waitcnt lgkmcnt(0)")
    a("s_barrier")
    a("v_mov_b32 v9, 75776")
    for i in range(9):
        a(f"ds_read_b128 {vr(40+8*i,4)}, v{20+i}")
        a(f"v_add_u32 v{20+i}, v9, v{20+i}")
        a(f"ds_read_b128 {vr(44+8*i,4)}, v{20+i}")
    for i in range(9):
        a(f"s_waitcnt lgkmcnt({min(15, 2*(8-i))})")
        for j in range(4):
            a(f"v_add_f32 v{40+8*i+j}, v{40+8*i+j}, v{44+8*i+j}")
        a(f"buffer_store_dwordx4 {vr(40+8*i,4)}, v{30+i}, s[20:23], s46 offen")
    stm.dump(3, "K4_END")
    a.label("K4_END")
    a("s_endpgm")
    return kernel_desc("k4_kernel", 192, 64), f"; @launch kernel=k4_kernel grid=(256,1,1) block=(512,1,1) lds={K4_LDS}"
```
